```python
import torch

def _softmax(x, axis=-1):
    return torch.softmax(x, dim=axis)
def _gelu(x):
    return torch.nn.functional.gelu(x, approximate="tanh")
def _silu(x):
    return torch.nn.functional.silu(x)
def _sigmoid(x):
    return torch.sigmoid(x)
def _layernorm(x, axis=-1, eps=1e-5):
    m = x.mean(dim=axis, keepdim=True)
    v = x.var(dim=axis, keepdim=True, unbiased=False)
    return (x - m) / torch.sqrt(v + eps)
def _scatter_add(tgt, idx, src, axis=0):
    return tgt.clone().index_add_(axis, idx, src)
def _segment_sum(src, seg, n):
    out = torch.zeros((n,) + src.shape[1:], dtype=src.dtype)
    return out.index_add_(0, seg, src)
def _pad(x, pw):
    flat = tuple(v for pair in reversed(pw) for v in pair)
    return torch.nn.functional.pad(x, flat)

kernel_name = 'standalone__mha_block_cached__near_ridge'

def setup_inputs():

    _w = (lambda a: (lambda t: t.to(torch.bfloat16) if t.is_floating_point() else t)(torch.as_tensor(a)))
    B, Sq, D = 16, 96, 640
    H, Sk, Dh = 32, 512, 128
    return {
        "x": _w((lambda *s: torch.randn(*s, dtype=torch.bfloat16) * 0.8)(B, Sq, D)),
        "k_cache": _w((lambda *s: torch.randn(*s, dtype=torch.bfloat16) * 0.8)(B, H, Sk, Dh)),
        "v_cache": _w((lambda *s: torch.randn(*s, dtype=torch.bfloat16) * 0.05)(B, H, Sk, Dh)),
        "wq": _w((lambda *s: torch.randn(*s, dtype=torch.bfloat16) * 0.8)(D, H * Dh) * (D ** -0.5)),
        "wo": _w((lambda *s: torch.randn(*s, dtype=torch.bfloat16) * 0.05)(H * Dh, D) * ((H * Dh) ** -0.5)),
    }

def reference(x, k_cache, v_cache, wq, wo):
    B, Sq, D = x.shape
    H, Dh = 32, 128
    q = (lambda x, *d: x.permute(*d))((x @ wq).reshape(B, Sq, H, Dh), 0, 2, 1, 3)
    scores = torch.einsum("bhqd,bhkd->bhqk", q, k_cache) * (Dh ** -0.5)
    p = _softmax(scores, axis=-1)
    o = torch.einsum("bhqk,bhkd->bhqd", p, v_cache)
    return (lambda x, *d: x.permute(*d))(o, 0, 2, 1, 3).reshape(B, Sq, H * Dh) @ wo
```

```python
import re

_REG = re.compile(r'^(-)?(?:abs\()?([vsa])(?:(\d+)|\[(\d+):(\d+)\])\)?$')

def regs_of(tok):
    tok = tok.strip()
    if tok in ('vcc', 'exec', 'm0', 'scc'):
        return [tok]
    if tok in ('vcc_lo', 'vcc_hi'):
        return ['vcc']
    m = _REG.match(tok)
    if not m:
        return []
    k = m.group(2)
    if m.group(3) is not None:
        return [(k, int(m.group(3)))]
    return [(k, i) for i in range(int(m.group(4)), int(m.group(5)) + 1)]

TRANS = ('v_exp_f32', 'v_log_f32', 'v_rcp_f32', 'v_rsq_f32', 'v_sqrt_f32', 'v_sin_f32', 'v_cos_f32')

class Inst:
    def __init__(self, text):
        self.text = text
        body = text.split(';')[0].strip()
        parts = body.split(None, 1)
        self.op = parts[0]
        rest = parts[1] if len(parts) > 1 else ''
        ops = [t.strip() for t in rest.split(',')] if rest else []
        mods = []
        if ops:
            last = ops[-1].split()
            ops[-1] = last[0] if last else ''
            mods = last[1:]
        self.ops, self.mods = ops, mods
        op = self.op
        R = lambda i: regs_of(ops[i]) if i < len(ops) else []
        allr = lambda s=0: [r for i in range(s, len(ops)) for r in regs_of(ops[i])]
        self.rd, self.wr, self.kind = [], [], 'other'
        self.mf = None
        self.states = 1
        if op.startswith('v_mfma'):
            self.kind = 'mfma'
            self.mf = (R(0), R(1), R(2), R(3))
            self.wr = R(0); self.rd = R(1) + R(2) + R(3)
            self.passes = 8 if '32x32' in op else 4
        elif op.startswith('v_cmp'):
            self.kind = 'valu'; self.wr = R(0); self.rd = allr(1)
        elif op.startswith('v_permlane') and 'swap' in op:
            self.kind = 'valu'; self.wr = R(0) + R(1); self.rd = R(0) + R(1)
        elif op.startswith('v_'):
            self.kind = 'trans' if op.split('_e')[0] in TRANS else 'valu'
            self.wr = R(0); self.rd = allr(1)
            if op.startswith('v_fmac') or op.startswith('v_pk_fmac') or op.startswith('v_writelane'):
                self.rd = self.rd + R(0)
            if op.startswith('v_add_co') or op.startswith('v_sub_co') or op.startswith('v_addc_co'):
                self.wr = R(0) + R(1); self.rd = allr(2)
        elif op.startswith('ds_read') or op.startswith('ds_bpermute') or op.startswith('ds_swizzle'):
            self.kind = 'ds'; self.wr = R(0); self.rd = allr(1)
        elif op.startswith('ds_'):
            self.kind = 'ds'; self.rd = allr(0)
        elif op.startswith('buffer_load') or op.startswith('global_load'):
            self.kind = 'vmem'
            if 'lds' in mods or 'lds' in op:
                self.rd = allr(0) + ['m0']; self.dma = True
            else:
                self.wr = R(0); self.rd = allr(1)
        elif op.startswith('buffer_store') or op.startswith('global_store'):
            self.kind = 'vmem'; self.rd = allr(0)
            self.store_data = R(0) if op.startswith('buffer') else R(1)
            self.wide = op.endswith('x4') or op.endswith('x3')
        elif op.startswith('buffer_atomic'):
            self.kind = 'vmem'; self.rd = allr(0)
            if 'sc0' in mods: self.wr = R(0)
        elif op.startswith('global_atomic'):
            self.kind = 'vmem'
            if 'sc0' in mods:
                self.wr = R(0); self.rd = allr(1)
            else:
                self.rd = allr(0)
        elif op.startswith('buffer_wbl2') or op.startswith('buffer_inv'):
            self.kind = 'vmem'
        elif op.startswith('s_load') or op.startswith('s_memtime') or op.startswith('s_memrealtime'):
            self.kind = 'smem'; self.wr = R(0); self.rd = allr(1)
        elif op == 's_nop':
            self.states = int(ops[0], 0) + 1
        elif op.startswith('s_cmp') or op.startswith('s_bitcmp'):
            self.kind = 'salu'; self.rd = allr(0); self.wr = ['scc']
        elif op in ('s_waitcnt', 's_barrier', 's_endpgm', 's_sleep', 's_setprio', 's_branch') or op.startswith('s_cbranch'):
            self.kind = 'ctl'
        elif op.startswith('s_'):
            self.kind = 'salu'; self.wr = R(0) + ['scc']; self.rd = allr(1)
        else:
            raise ValueError('unknown op ' + text)

class Prog:
    def __init__(self):
        self.out = []
        self.reset_state()
        self.nops_inserted = 0
    def reset_state(self):
        self.pos = 0
        self.vm = []
        self.lg = []
        self.w_valu = {}; self.w_trans = {}; self.w_mfma = {}; self.r_mfc = {}; self.w_salu = {}
        self.st_data = {}
    def raw(self, line):
        self.out.append(line)
    def comment(self, c):
        self.out.append('    ; ' + c)
    def _put(self, text, states=1):
        self.out.append('    ' + text)
        self.pos += states
    def _pad(self, n):
        self.nops_inserted += n
        while n > 0:
            k = min(n, 16)
            self._put('s_nop %d' % (k - 1), k)
            n -= k
    def _need(self, ins):
        need = 0
        pos = self.pos
        def req(tbl, regs, ws):
            nonlocal need
            for r in regs:
                if r in tbl:
                    d = pos - tbl[r] - 1
                    if ws - d > need: need = ws - d
        k = ins.kind
        isv = k in ('valu', 'trans')
        if k == 'mfma':
            d, a, b, c = ins.mf
            req(self.w_valu, a + b + c, 2)
            for r in a + b:
                if r in self.w_mfma:
                    p, ps, dd = self.w_mfma[r]
                    ws = {4: 8, 8: 12}[ps]; need = max(need, ws - (pos - p - 1))
            for r in c:
                if r in self.w_mfma:
                    p, ps, dd = self.w_mfma[r]
                    if dd == c and ps == ins.passes: continue
                    ws = {4: 6, 8: 10}[ps]; need = max(need, ws - (pos - p - 1))
            for r in d:
                if r in self.w_mfma and r not in c:
                    p, ps, dd = self.w_mfma[r]
                    ws = {4: 6, 8: 10}[ps]; need = max(need, ws - (pos - p - 1))
            req(self.w_valu, ['exec'], 4)
        else:
            if isv or k in ('ds', 'vmem'):
                for r in ins.rd + ins.wr:
                    if r in self.w_mfma:
                        p, ps, dd = self.w_mfma[r]
                        ws = {4: 8, 8: 12}[ps]; need = max(need, ws - (pos - p - 1))
            if isv:
                for r in ins.wr:
                    if r in self.r_mfc:
                        p, ps = self.r_mfc[r]
                        ws = {4: 3, 8: 7}[ps]; need = max(need, ws - (pos - p - 1))
                if k != 'trans':
                    req(self.w_trans, ins.rd + ins.wr, 1)
                sregs = [r for r in ins.rd if r == 'vcc' or (isinstance(r, tuple) and r[0] == 's')]
                req(self.w_valu, sregs, 2)
                if ins.op.startswith('v_cndmask') : req(self.w_valu, ['vcc'], 2)
                if ins.op.startswith('v_permlane') or 'dpp' in ins.op:
                    req(self.w_valu, ins.rd, 2)
                if ins.op.startswith('v_readfirstlane') or ins.op.startswith('v_readlane'):
                    req(self.w_valu, ins.rd, 1)
                    req(self.w_valu, ['exec'], 4)
                req(self.st_data, ins.wr, 2)
            else:
                req(self.st_data, ins.wr, 1)
            if k == 'vmem':
                sregs = [r for r in ins.rd if isinstance(r, tuple) and r[0] == 's']
                req(self.w_valu, sregs, 5)
                if 'm0' in ins.rd: req(self.w_salu, ['m0'], 1)
            if k == 'salu' or k == 'ctl':
                sregs = [r for r in ins.rd if r == 'vcc' or (isinstance(r, tuple) and r[0] == 's')]
                req(self.w_valu, sregs, 1)
        return need
    def _waits(self, ins):
        touched = set(ins.rd) | set(ins.wr)
        vm_n = None; lg_n = None
        for i, d in enumerate(self.vm):
            if d & touched: vm_n = len(self.vm) - 1 - i
        for i, d in enumerate(self.lg):
            if d & touched: lg_n = len(self.lg) - 1 - i
        if vm_n is not None or lg_n is not None:
            self.wait(vm=vm_n, lg=lg_n)
    def wait(self, vm=None, lg=None):
        s = []
        if vm is not None:
            vm = min(vm, 63)
            s.append('vmcnt(%d)' % vm)
            if len(self.vm) > vm: self.vm = self.vm[len(self.vm) - vm:] if vm else []
        if lg is not None:
            lg = min(lg, 15)
            s.append('lgkmcnt(%d)' % lg)
            if len(self.lg) > lg: self.lg = self.lg[len(self.lg) - lg:] if lg else []
        self._put('s_waitcnt ' + ' '.join(s))
    def __call__(self, text):
        for line in text.strip().split('\n'):
            line = line.strip()
            if not line or line.startswith(';'):
                if line: self.out.append('    ' + line)
                continue
            self.emit(line)
    def emit(self, text):
        ins = Inst(text)
        if ins.op == 's_waitcnt':
            vm = re.search(r'vmcnt\((\d+)\)', text); lg = re.search(r'lgkmcnt\((\d+)\)', text)
            self.wait(int(vm.group(1)) if vm else None, int(lg.group(1)) if lg else None)
            return
        if ins.kind == 'ctl' and (ins.op.startswith('s_cbranch') or ins.op == 's_branch'):
            self.boundary()
        self._waits(ins)
        n = self._need(ins)
        if n > 0: self._pad(n)
        p = self.pos
        self._put(text, ins.states)
        k = ins.kind
        for r in ins.wr:
            for t in (self.w_valu, self.w_trans, self.w_mfma, self.w_salu):
                t.pop(r, None)
        if k == 'mfma':
            for r in ins.wr: self.w_mfma[r] = (p, ins.passes, ins.mf[0])
            for r in ins.mf[3]: self.r_mfc[r] = (p, ins.passes)
        elif k in ('valu', 'trans'):
            for r in ins.wr:
                self.w_valu[r] = p
                if k == 'trans': self.w_trans[r] = p
        elif k == 'salu':
            for r in ins.wr: self.w_salu[r] = p
        elif k == 'ds':
            self.lg.append(set(ins.wr))
        elif k == 'smem':
            self.lg.append(set(ins.wr)); self.smem_pending = True
        elif k == 'vmem':
            self.vm.append(set(ins.wr))
            if getattr(ins, 'wide', False):
                for r in ins.store_data: self.st_data[r] = p
    def boundary(self):
        assert not any(self.vm), 'vmem register loads pending at control-flow boundary'
        assert not any(self.lg), 'lds register loads pending at control-flow boundary'
        need = 0
        for r, (p, ps, dd) in self.w_mfma.items():
            need = max(need, {4: 8, 8: 12}[ps] - (self.pos - p - 1))
        for r, p in self.w_valu.items():
            ws = 5 if (isinstance(r, tuple) and r[0] == 's') or r in ('vcc', 'exec') else 2
            need = max(need, ws - (self.pos - p - 1))
        for r, p in self.st_data.items():
            need = max(need, 2 - (self.pos - p - 1))
        for r, p in self.w_salu.items():
            if r == 'm0': need = max(need, 1 - (self.pos - p - 1))
        if need > 0: self._pad(need)
        self.w_valu = {}; self.w_trans = {}; self.w_mfma = {}; self.r_mfc = {}; self.w_salu = {}; self.st_data = {}
        self.vm = []; self.lg = []
    def label(self, name):
        self.boundary()
        self.out.append(name + ':')
    def text(self):
        return '\n'.join(self.out) + '\n'

def v(n, c=1):
    return 'v%d' % n if c == 1 else 'v[%d:%d]' % (n, n + c - 1)
def s(n, c=1):
    return 's%d' % n if c == 1 else 's[%d:%d]' % (n, n + c - 1)
```

```python
import sys
from asmgen import *

OPT = dict(a.split('=') for a in sys.argv[2:]) if len(sys.argv) > 2 else {}
NOCOMP = int(OPT.get('nocomp', 0))
NT = OPT.get('nt', '')
ONLYA = int(OPT.get('onlya', 0))

KA = "mha_attn_kernel"
KB = "mha_oproj_kernel"
HDR = open('standalone__mha_block_cached__near_ridge.s.ref').read().split('; Override')[0]

SC = 128 ** -0.5 * 1.4426950408889634
import struct
def f32(x): return '0x%08x' % struct.unpack('<I', struct.pack('<f', x))[0]

VS = [0, 16384, 32768, 49152]; GS = [65536, 81920]; KS = [98304 + 16384 * i for i in range(4)]
WSLOT = [GS[0], GS[1], VS[0], VS[1], VS[2], VS[3], GS[0], GS[1], VS[2], VS[3]]

tiles = []
for h in range(2):
    for t in range(10): tiles.append(('W', h, t, WSLOT[t]))
    for u in range(2):
        for j in range(4): tiles.append(('K', h, 4 * u + j, KS[j]))
        for j in range(4): tiles.append(('V', h, 4 * u + j, VS[j]))
NSTEP = len(tiles)
issue_after = {}
last = {}
for sidx, t in enumerate(tiles):
    issue_after[sidx] = (last[t[3]] + 1) if t[3] in last else -1
    last[t[3]] = sidx

p = Prog()

def kernel_head(name):
    p.raw(".globl %s\n.p2align 8\n.type %s,@function\n%s:" % (name, name, name))
    p.reset_state()

def srd(d, lo, nbytes):
    p(f"""
    s_mov_b32 s{d}, s{lo}
    s_and_b32 s{d+1}, s{lo+1}, 0xffff
    s_mov_b32 s{d+2}, {nbytes}
    s_mov_b32 s{d+3}, 0x20000
    """)

kernel_head(KA)
p("""
s_cmp_ge_u32 s2, 256
s_cbranch_scc1 LA_end
s_load_dwordx16 s[16:31], s[0:1], 0
v_lshrrev_b32 v1, 6, v0
v_and_b32 v0, 63, v0
v_readfirstlane_b32 s3, v1
s_and_b32 s4, s2, 7
s_lshr_b32 s5, s2, 3
s_and_b32 s6, s4, 1
s_lshl_b32 s6, s6, 3
s_and_b32 s7, s5, 7
s_add_u32 s6, s6, s7            ; b
s_lshr_b32 s7, s4, 1
s_lshl_b32 s7, s7, 2
s_lshr_b32 s8, s5, 3
s_add_u32 s7, s7, s8
s_lshl_b32 s7, s7, 1            ; h0
s_waitcnt lgkmcnt(0)
""")
srd(32, 16, 16 * 96 * 640 * 2)
srd(36, 18, 67108864)
srd(40, 20, 67108864)
srd(44, 22, 640 * 4096 * 2)
srd(48, 30, 48 * 32 * 8192)
p("""
s_cmp_lt_u32 s3, 3
s_cbranch_scc1 LA_comp
s_cmp_eq_u32 s3, 6
s_cbranch_scc1 LA_end
s_and_b32 s9, s3, 3
s_cmp_eq_u32 s9, 3
s_cbranch_scc1 LA_kv
""")

def loader(kinds, label_done):
    mine = [i for i, t in enumerate(tiles) if t[0] in kinds]
    issued = []
    def issue(i):
        kind, h, idx, slot = tiles[i]
        for g in range(2):
            p(f"s_add_u32 s12, s10, {slot + g * 4096}")
            p("s_mov_b32 m0, s12")
            if kind == 'W':
                p(f"s_add_u32 s13, s11, {h * 256 + (64 * idx + 16 * g) * 8192}")
                for q in range(4):
                    p(f"buffer_load_dwordx4 v{4+q}, s[44:47], s13 offen offset:{q*1024} lds")
            else:
                p(f"s_add_u32 s13, s11, {h * 131072 + idx * 16384 + g * 4096}")
                for q in range(4):
                    if kind == 'K':
                        p(f"buffer_load_dwordx4 v{4+q}, s[36:39], s13 offen offset:{q*1024} {NT} lds")
                    else:
                        p(f"buffer_load_dwordx4 v8, s[40:43], s13 offen offset:{q*1024} {NT} lds")
        issued.append(i)
    for i in mine:
        if issue_after[i] == -1: issue(i)
    lastm = mine[-1]
    for st in range(NSTEP):
        if st in mine:
            assert st in issued, (st, tiles[st])
            n = len(issued) - 1 - issued.index(st)
            p(f"s_waitcnt vmcnt({min(8 * n, 63)})")
        p("s_barrier")
        if st == lastm: break
        for i in mine:
            if issue_after[i] == st: issue(i)
    p("s_endpgm")

p("""
s_sub_u32 s9, s3, 4
s_lshl_b32 s10, s9, 13
s_lshl_b32 s11, s9, 18
s_lshl_b32 s12, s7, 8
s_add_u32 s11, s11, s12         ; + h0*256
v_lshrrev_b32 v1, 4, v0         ; rr
v_and_b32 v2, 15, v0
v_lshlrev_b32 v3, 2, v1
v_xor_b32 v2, v2, v3
v_lshlrev_b32 v2, 4, v2
v_lshl_add_u32 v4, v1, 13, v2
v_add_u32 v5, 31744, v4
v_add_u32 v6, 63488, v4
v_add_u32 v7, 95232, v4
""")
loader('W', None)

p.label("LA_kv")
p("""
s_lshr_b32 s9, s3, 2
s_lshl_b32 s10, s9, 13          ; half*8192
s_lshl_b32 s11, s6, 5
s_add_u32 s11, s11, s7
s_lshl_b32 s11, s11, 17         ; (b*32+h0)*131072
s_add_u32 s11, s11, s10
v_lshrrev_b32 v1, 4, v0         ; rr
v_and_b32 v2, 15, v0
v_xor_b32 v3, v2, v1            ; c' ^ rr
v_lshlrev_b32 v3, 4, v3
v_lshl_add_u32 v4, v1, 8, v3
v_xor_b32 v5, 64, v4
v_xor_b32 v6, 0x80, v4
v_xor_b32 v7, 0xc0, v4
v_lshlrev_b32 v3, 2, v1
v_xor_b32 v2, v2, v3
v_lshlrev_b32 v2, 4, v2
v_lshl_add_u32 v8, v1, 8, v2
""")
loader('KV', None)

S0, O0, Q0, F0 = 128, 64, 32, 16
AD = 0
VKB, VVB, VWB, VXO, VM, VL, T0, T1 = 8, 9, 10, 11, 12, 13, 14, 15
p.label("LA_comp")
if NOCOMP:
    for st in range(NSTEP):
        p("s_barrier")
    p("s_endpgm")
p(f"""
v_mov_b32 v16, v0               ; lane
v_and_b32 v17, 31, v16          ; q / key
v_lshrrev_b32 v18, 5, v16       ; hi
v_and_b32 v19, 15, v16          ; t' = 4r+c
v_bfe_u32 v20, v16, 4, 1        ; dhalf
v_lshrrev_b32 v21, 2, v19       ; r
v_and_b32 v22, 3, v19           ; c
; K base
v_xor_b32 v23, v18, v19
v_lshlrev_b32 v23, 4, v23
v_lshl_add_u32 v23, v17, 8, v23
v_add_u32 v{VKB}, {KS[0]}, v23
v_lshl_add_u32 v23, v18, 2, v21
v_lshlrev_b32 v23, 8, v23
v_lshl_add_u32 v23, v21, 6, v23
v_lshl_add_u32 v24, v20, 5, v23
v_lshl_add_u32 v{VVB}, v22, 3, v24
v_lshl_add_u32 v23, v18, 3, v21
v_lshlrev_b32 v23, 8, v23
v_lshl_add_u32 v23, v21, 6, v23
v_lshl_add_u32 v23, v20, 5, v23
v_and_b32 v24, 1, v22
v_lshl_add_u32 v23, v24, 4, v23
v_lshrrev_b32 v24, 1, v22
v_lshl_add_u32 v{VWB}, v24, 3, v23
v_mul_u32_u24 v23, 1280, v17
v_lshl_add_u32 v{VXO}, v18, 4, v23
s_mul_i32 s12, s6, 3
s_add_u32 s12, s12, s3          ; qt
s_mul_i32 s13, s12, 40960
s_lshl_b32 s14, s12, 5
s_add_u32 s14, s14, s7
s_lshl_b32 s14, s14, 13
s_mov_b32 s15, {f32(SC)}
s_mov_b32 s52, 0
""")

def stream(items, D=4, DELAY=2):
    N = len(items)
    nxt = 0
    cur_tile = None
    bar_at = None
    def issue_reads(upto, n_now):
        nonlocal nxt, cur_tile, bar_at
        while nxt < min(upto, N):
            it = items[nxt]
            if it['tile'] != cur_tile:
                if n_now is not None and bar_at is None and nxt > 0:
                    bar_at = n_now + DELAY
                if bar_at is not None and n_now is not None and n_now < bar_at and nxt > n_now + 1:
                    return
                p("s_waitcnt lgkmcnt(0)")
                p("s_barrier")
                cur_tile = it['tile']; bar_at = None
                for t in it.get('pre', []): p(t)
            A = F0 + 4 * (nxt % D)
            for t in it['rd'](A): p(t)
            nxt += 1
    issue_reads(D, None)
    for n in range(N):
        it = items[n]
        p(it['mf'](F0 + 4 * (n % D)))
        issue_reads(n + D + 1, n)
        for t in it.get('fill', []): p(t)

def xreg(ks):
    return Q0 + 4 * ks if ks < 8 else S0 + 4 * (ks - 8)

p.label("LA_head")
for ks in range(40):
    p(f"buffer_load_dwordx4 {v(xreg(ks), 4)}, v{VXO}, s[32:35], s13 offen offset:{ks * 32}")
for T in range(4):
    p(f"v_xor_b32 v{T}, {T << 6}, v{VWB}")
    p(f"v_add_u32 v{4+T}, 0x10000, v{T}")
p(f"v_mov_b32 v{VM}, {f32(-1e30)}")
p(f"v_mov_b32 v{VL}, 0")
items = []
for t in range(10):
    slot = WSLOT[t]
    ab, so = (4, slot - 65536) if slot >= 65536 else (0, slot)
    for k4 in range(4):
        ks = 4 * t + k4
        for T in range(4):
            c = '0' if ks == 0 else v(O0 + 16 * T, 16)
            items.append(dict(
                tile=('W', t),
                mf=lambda A, T=T, ks=ks, c=c: f"v_mfma_f32_32x32x16_bf16 {v(O0 + 16*T, 16)}, {v(A, 4)}, {v(xreg(ks), 4)}, {c}",
                rd=lambda A, T=T, k4=k4, ab=ab, so=so: [
                    f"ds_read_b64_tr_b16 {v(A, 2)}, v{ab + T} offset:{so + 4096 * k4}",
                    f"ds_read_b64_tr_b16 {v(A + 2, 2)}, v{ab + T} offset:{so + 4096 * k4 + 1024}"]))
stream(items)
for T in range(4):
    for j in range(8):
        p(f"v_cvt_pk_bf16_f32 v{Q0 + 8*T + j}, v{O0 + 16*T + 2*j}, v{O0 + 16*T + 2*j + 1}")
p("s_mov_b32 s53, 0")
p.label("LA_unit")
for ss in range(8):
    p(f"v_xor_b32 v{ss}, {ss << 5}, v{VKB}")
items = []
for n in range(8):
    j, a = n // 2, n % 2
    for ss in range(8):
        c = '0' if ss == 0 else v(S0 + 16 * n, 16)
        fill = []
        if n > 0 and ss >= 4:
            b = S0 + 16 * (n - 1) + 4 * (ss - 4)
            for e, tr in enumerate((T0, T1)):
                if n == 1 and ss == 4:
                    fill.append(f"v_max_f32 v{tr}, v{b + 2*e}, v{b + 2*e + 1}")
                else:
                    fill.append(f"v_max3_f32 v{tr}, v{tr}, v{b + 2*e}, v{b + 2*e + 1}")
        items.append(dict(
            tile=('K', j), fill=fill,
            mf=lambda A, n=n, ss=ss, c=c: f"v_mfma_f32_32x32x16_bf16 {v(S0 + 16*n, 16)}, {v(A, 4)}, {v(Q0 + 4*ss, 4)}, {c}",
            rd=lambda A, j=j, a=a, ss=ss: [f"ds_read_b128 {v(A, 4)}, v{ss} offset:{16384 * j + 8192 * a}"]))
stream(items)
for T in range(4):
    p(f"v_xor_b32 v{T}, {T << 6}, v{VVB}")
for q4 in range(4):
    b = S0 + 16 * 7 + 4 * q4
    for e, tr in enumerate((T0, T1)):
        p(f"v_max3_f32 v{tr}, v{tr}, v{b + 2*e}, v{b + 2*e + 1}")
MC, AL = 4, 5
p(f"""
v_max_f32 v{T0}, v{T0}, v{T1}
v_mov_b32 v{T1}, v{T0}
v_permlane32_swap_b32 v{T0}, v{T1}
v_max3_f32 v{T0}, v{T0}, v{T1}, v{VM}
v_sub_f32 v{AL}, v{VM}, v{T0}
v_mul_f32 v{AL}, s15, v{AL}
v_exp_f32 v{AL}, v{AL}
v_mov_b32 v{VM}, v{T0}
v_mul_f32 v{MC}, s15, v{T0}
v_mul_f32 v{VL}, v{VL}, v{AL}
""")
def pops(f):
    r = S0 + 8 * f
    F = lambda i: f"v_fma_f32 v{r+i}, v{r+i}, s15, -v{MC}"
    E = lambda i: f"v_exp_f32 v{r+i}, v{r+i}"
    A = lambda i: f"v_add_f32 v{VL}, v{VL}, v{r+i}"
    C = lambda i: f"v_cvt_pk_bf16_f32 v{r+i}, v{r+2*i}, v{r+2*i+1}"
    return [F(0), F(1), E(0), E(1), F(2), F(3), E(2), E(3), A(0), A(1), C(0), F(4), F(5), E(4), E(5), A(2), A(3), C(1),
            F(6), F(7), E(6), E(7), A(4), A(5), C(2), A(6), A(7), C(3)]
for i in range(64):
    p(f"v_mul_f32 v{O0+i}, v{O0+i}, v{AL}")
for t in pops(0): p(t)
items = []
for f in range(16):
    j, k4 = f // 4, f % 4
    nx = pops(f + 1) if f < 15 else []
    for T in range(4):
        items.append(dict(
            tile=('V', j), fill=nx[7 * T:7 * T + 7],
            mf=lambda A, T=T, f=f: f"v_mfma_f32_32x32x16_bf16 {v(O0 + 16*T, 16)}, {v(A, 4)}, {v(S0 + 8*f, 4)}, {v(O0 + 16*T, 16)}",
            rd=lambda A, T=T, j=j, k4=k4: [
                f"ds_read_b64_tr_b16 {v(A, 2)}, v{T} offset:{16384 * j + 4096 * k4}",
                f"ds_read_b64_tr_b16 {v(A + 2, 2)}, v{T} offset:{16384 * j + 4096 * k4 + 2048}"]))
stream(items)
p("""
s_add_u32 s53, s53, 1
s_cmp_lt_u32 s53, 2
s_cbranch_scc1 LA_unit
""")
p(f"""
v_mov_b32 v{T1}, v{VL}
v_permlane32_swap_b32 v{VL}, v{T1}
v_add_f32 v{VL}, v{VL}, v{T1}
v_rcp_f32 v{VL}, v{VL}
v_mbcnt_lo_u32_b32 v{T0}, -1, 0
v_mbcnt_hi_u32_b32 v{T0}, -1, v{T0}
v_lshlrev_b32 v{T0}, 4, v{T0}
s_add_u32 s54, s14, 4096
""")
for f in range(8):
    r = O0 + 8 * f
    for i in range(8): p(f"v_mul_f32 v{r+i}, v{r+i}, v{VL}")
    for i in range(4): p(f"v_cvt_pk_bf16_f32 v{r+i}, v{r+2*i}, v{r+2*i+1}")
    p(f"buffer_store_dwordx4 {v(r, 4)}, v{T0}, s[48:51], {'s14' if f < 4 else 's54'} offen offset:{(f % 4) * 1024}")
p("""
s_add_u32 s14, s14, 8192
s_add_u32 s52, s52, 1
s_cmp_lt_u32 s52, 2
s_cbranch_scc1 LA_head
""")
p.label("LA_end")
p("s_endpgm")

kernel_head(KB)
p("""
s_cmp_ge_u32 s2, 240
s_cbranch_scc1 LB_end
s_load_dwordx16 s[16:31], s[0:1], 0
v_lshrrev_b32 v1, 6, v0
v_and_b32 v0, 63, v0
v_readfirstlane_b32 s3, v1
s_and_b32 s4, s2, 7
s_lshr_b32 s5, s2, 3            ; i 0..29
s_mul_i32 s6, s5, 205
s_lshr_b32 s6, s6, 11           ; i/10
s_mul_i32 s7, s6, 10
s_sub_u32 s7, s5, s7            ; nt
s_mul_i32 s4, s4, 3
s_add_u32 s6, s6, s4            ; mt
s_waitcnt lgkmcnt(0)
""")
srd(32, 24, 4096 * 640 * 2)
srd(36, 26, 16 * 96 * 640 * 2)
srd(48, 30, 48 * 32 * 8192)
ACC, OF, FB = 0, 64, 192
WA0, WA1, DV, LO, X0 = 224, 225, 226, 230, 231
p(f"""
v_mov_b32 v{X0}, v0
s_lshl_b32 s8, s3, 14
v_lshrrev_b32 v1, 3, v{X0}      ; rr
v_and_b32 v2, 7, v{X0}
v_bfe_u32 v3, v{X0}, 4, 1
v_lshlrev_b32 v3, 2, v3
v_xor_b32 v2, v2, v3
v_lshlrev_b32 v2, 4, v2
v_mul_u32_u24 v1, 1280, v1
v_add_u32 v{DV}, v1, v2
v_add_u32 v{DV+1}, 9216, v{DV}
v_add_u32 v{DV+2}, 18432, v{DV}
v_add_u32 v{DV+3}, 27648, v{DV}
v_lshrrev_b32 v1, 5, v{X0}      ; hi
v_bfe_u32 v2, v{X0}, 2, 2       ; r
v_and_b32 v3, 3, v{X0}          ; c
v_bfe_u32 v4, v{X0}, 4, 1       ; dhalf
v_lshl_add_u32 v5, v1, 2, v2
v_lshlrev_b32 v5, 7, v5
v_lshrrev_b32 v6, 1, v2
v_lshl_add_u32 v5, v6, 6, v5
v_and_b32 v6, 1, v3
v_lshl_add_u32 v5, v6, 5, v5
v_lshl_add_u32 v5, v4, 4, v5
v_lshrrev_b32 v6, 1, v3
v_lshl_add_u32 v5, v6, 3, v5
v_add_u32 v{WA0}, s8, v5
v_xor_b32 v{WA1}, 64, v{WA0}
v_lshlrev_b32 v{LO}, 4, v{X0}
s_mul_i32 s9, s3, 655360
s_lshl_b32 s10, s7, 7
s_add_u32 s9, s9, s10
s_lshl_b32 s10, s6, 6
s_lshl_b32 s11, s3, 2
s_add_u32 s10, s10, s11
s_lshl_b32 s10, s10, 13
""")
def dma_chunk(ch):
    for g in range(2):
        p(f"s_add_u32 s12, s8, {(ch % 2) * 8192 + g * 4096}")
        p("s_mov_b32 m0, s12")
        p(f"s_add_u32 s13, s9, {(64 * ch + 32 * g) * 1280}")
        for q in range(4):
            p(f"buffer_load_dwordx4 v{DV+q}, s[32:35], s13 offen offset:{q*1024} lds")
def o_chunk(ch):
    for a in range(2):
        p(f"s_add_u32 s13, s10, {a * 262144 + ch * 4096}")
        for j in range(4):
            p(f"buffer_load_dwordx4 {v(OF + 32 * (ch % 4) + 16 * a + 4 * j, 4)}, v{LO}, s[48:51], s13 offen offset:{j*1024}")
order = []
def D(ch): dma_chunk(ch); order.append(('D', ch))
def O(ch): o_chunk(ch); order.append(('O', ch))
D(0); O(0); D(1); O(1); O(2); O(3)
for ch in range(8):
    n = len(order) - 1 - order.index(('D', ch))
    p(f"s_waitcnt vmcnt({8 * n})")
    for k4 in range(4):
        for T in range(2):
            A = FB + 4 * (2 * k4 + T)
            wa = WA0 if T == 0 else WA1
            p(f"ds_read_b64_tr_b16 {v(A, 2)}, v{wa} offset:{(ch % 2) * 8192 + 2048 * k4}")
            p(f"ds_read_b64_tr_b16 {v(A + 2, 2)}, v{wa} offset:{(ch % 2) * 8192 + 2048 * k4 + 1024}")
    for k4 in range(4):
        for T in range(2):
            A = FB + 4 * (2 * k4 + T)
            for a in range(2):
                acc = ACC + 16 * (2 * T + a)
                c = '0' if (ch == 0 and k4 == 0) else v(acc, 16)
                p(f"v_mfma_f32_32x32x16_bf16 {v(acc, 16)}, {v(A, 4)}, {v(OF + 32 * (ch % 4) + 16 * a + 4 * k4, 4)}, {c}")
            if k4 == 3 and T == 1:
                pass
        if k4 == 3:
            if ch + 2 < 8: D(ch + 2)
            if ch + 4 < 8: O(ch + 4)
p(f"v_add_u32 v{WA0}, s8, v{LO}")
for t in range(16):
    p(f"ds_write_b128 v{WA0}, {v(ACC + 4 * t, 4)} offset:{t * 1024}")
p(f"""
s_lshl_b32 s11, s3, 11          ; (tile*4+2pair)*1024 = wv*2048
v_add_u32 v{WA1}, s11, v{LO}
v_add_u32 v{WA0}, 0x10000, v{WA1}
s_waitcnt lgkmcnt(0)
s_barrier
""")
for src in range(8):
    wa = WA1 if src < 4 else WA0
    for i in range(2):
        p(f"ds_read_b128 {v(64 + 8 * src + 4 * i, 4)}, v{wa} offset:{(src % 4) * 16384 + i * 1024}")
p(f"""
s_lshr_b32 s11, s3, 2           ; T
s_lshr_b32 s12, s3, 1
s_and_b32 s12, s12, 1           ; a
s_and_b32 s13, s3, 1            ; pair
s_lshl_b32 s14, s6, 1
s_add_u32 s14, s14, s12
s_mul_i32 s14, s14, 40960       ; row0*1280
s_lshl_b32 s15, s7, 7
s_add_u32 s14, s14, s15
s_lshl_b32 s15, s11, 6
s_add_u32 s14, s14, s15
s_lshl_b32 s15, s13, 4
s_add_u32 s14, s14, s15
v_and_b32 v1, 31, v{X0}
v_mul_u32_u24 v1, 1280, v1
v_lshrrev_b32 v2, 5, v{X0}
v_lshl_add_u32 v1, v2, 5, v1
""")
for step in (1, 2, 4):
    for src in range(0, 8, 2 * step):
        for e in range(8):
            p(f"v_add_f32 v{64 + 8*src + e}, v{64 + 8*src + e}, v{64 + 8*(src+step) + e}")
for i in range(4):
    p(f"v_cvt_pk_bf16_f32 v{64+i}, v{64+2*i}, v{64+2*i+1}")
p("buffer_store_dwordx4 v[64:67], v1, s[36:39], s14 offen")
p.label("LB_end")
p("s_endpgm")

def kd(name, vg, sg):
    return f""".p2align 6
.amdhsa_kernel {name}
  .amdhsa_next_free_vgpr {vg}
  .amdhsa_next_free_sgpr {sg}
  .amdhsa_accum_offset {vg}
  .amdhsa_group_segment_fixed_size 0
  .amdhsa_kernarg_size 64
  .amdhsa_user_sgpr_count 2
  .amdhsa_user_sgpr_kernarg_segment_ptr 1
  .amdhsa_system_sgpr_workgroup_id_x 1
.end_amdhsa_kernel
"""
launch = f"; @launch kernel={KA} grid=(256,1,1) block=(512,1,1) lds=163840\n"
if not ONLYA:
    launch += f"; @launch kernel={KB} grid=(240,1,1) block=(512,1,1) lds=131072\n"
src = HDR + launch + '.amdgcn_target "amdgcn-amd-amdhsa--gfx950"\n.text\n' + p.text() + '.section .rodata,"a"\n' + kd(KA, 256, 64) + kd(KB, 232, 64)
open(sys.argv[1], 'w').write(src)
print("nops inserted:", p.nops_inserted, "lines:", len(p.out))
```

```python
import sys
from asmgen import *

OPT = dict(a.split('=') for a in sys.argv[2:]) if len(sys.argv) > 2 else {}
NOCOMP = int(OPT.get('nocomp', 0))
NT = OPT.get('nt', '')
ONLYA = int(OPT.get('onlya', 0))
STAMP = int(OPT.get('stamp', 0))

KA = "mha_attn_kernel"
KB = "mha_oproj_kernel"
HDR = open('standalone__mha_block_cached__near_ridge.s.ref').read().split('; Override')[0]

SC = 128 ** -0.5 * 1.4426950408889634
import struct
def f32(x): return '0x%08x' % struct.unpack('<I', struct.pack('<f', x))[0]

VS = [0, 16384, 32768, 49152]; GS = [65536, 81920]; KS = [98304 + 16384 * i for i in range(4)]
WSLOT = [GS[0], GS[1], VS[0], VS[1], VS[2], VS[3], GS[0], GS[1], VS[2], VS[3]]

tiles = []
for h in range(2):
    for t in range(10): tiles.append(('W', h, t, WSLOT[t]))
    for u in range(2):
        for j in range(4): tiles.append(('K', h, 4 * u + j, KS[j]))
        for j in range(4): tiles.append(('V', h, 4 * u + j, VS[j]))
NSTEP = len(tiles)
issue_after = {}
last = {}
for sidx, t in enumerate(tiles):
    issue_after[sidx] = (last[t[3]] + 1) if t[3] in last else -1
    last[t[3]] = sidx

p = Prog()

def kernel_head(name):
    p.raw(".globl %s\n.p2align 8\n.type %s,@function\n%s:" % (name, name, name))
    p.reset_state()

def srd(d, lo, nbytes):
    p(f"""
    s_mov_b32 s{d}, s{lo}
    s_and_b32 s{d+1}, s{lo+1}, 0xffff
    s_mov_b32 s{d+2}, {nbytes}
    s_mov_b32 s{d+3}, 0x20000
    """)

def stamp(vr=7):
    if not STAMP: return
    p(f"""
    s_memtime s[56:57]
    s_waitcnt lgkmcnt(0)
    v_mov_b32 v{vr}, s56
    buffer_store_dword v{vr}, off, s[60:63], s58
    s_add_u32 s58, s58, 4
    """)
def stamp_init():
    if not STAMP: return
    srd(60, 30, 0x2000000)
    p("""
    s_lshl_b32 s58, s2, 3
    s_add_u32 s58, s58, s3
    s_lshl_b32 s58, s58, 8
    s_add_u32 s58, s58, 0x1000000
    """)
kernel_head(KA)
p("""
s_cmp_ge_u32 s2, 256
s_cbranch_scc1 LA_end
s_load_dwordx16 s[16:31], s[0:1], 0
v_lshrrev_b32 v1, 6, v0
v_and_b32 v0, 63, v0
v_readfirstlane_b32 s3, v1
s_and_b32 s4, s2, 7
s_lshr_b32 s5, s2, 3
s_and_b32 s6, s4, 1
s_lshl_b32 s6, s6, 3
s_and_b32 s7, s5, 7
s_add_u32 s6, s6, s7            ; b
s_lshr_b32 s7, s4, 1
s_lshl_b32 s7, s7, 2
s_lshr_b32 s8, s5, 3
s_add_u32 s7, s7, s8
s_lshl_b32 s7, s7, 1            ; h0
s_waitcnt lgkmcnt(0)
""")
srd(32, 16, 16 * 96 * 640 * 2)
srd(36, 18, 67108864)
srd(40, 20, 67108864)
srd(44, 22, 640 * 4096 * 2)
srd(48, 30, 48 * 32 * 8192)
stamp_init()
p("""
s_cmp_lt_u32 s3, 3
s_cbranch_scc1 LA_comp
s_cmp_eq_u32 s3, 6
s_cbranch_scc1 LA_end
s_and_b32 s9, s3, 3
s_cmp_eq_u32 s9, 3
s_cbranch_scc1 LA_kv
""")

def loader(kinds, label_done):
    mine = [i for i, t in enumerate(tiles) if t[0] in kinds]
    issued = []
    def issue(i):
        kind, h, idx, slot = tiles[i]
        for g in range(2):
            p(f"s_add_u32 s12, s10, {slot + g * 4096}")
            p("s_mov_b32 m0, s12")
            if kind == 'W':
                p(f"s_add_u32 s13, s11, {h * 256 + (64 * idx + 16 * g) * 8192}")
                for q in range(4):
                    p(f"buffer_load_dwordx4 v{4+q}, s[44:47], s13 offen offset:{q*1024} lds")
            else:
                p(f"s_add_u32 s13, s11, {h * 131072 + idx * 16384 + g * 4096}")
                for q in range(4):
                    if kind == 'K':
                        p(f"buffer_load_dwordx4 v{4+q}, s[36:39], s13 offen offset:{q*1024} {NT} lds")
                    else:
                        p(f"buffer_load_dwordx4 v8, s[40:43], s13 offen offset:{q*1024} {NT} lds")
        issued.append(i)
    nst = [0]
    def sst():
        if not STAMP or nst[0] >= 36: return
        p(f"""
        s_memtime s[56:57]
        s_waitcnt lgkmcnt(0)
        s_mov_b32 s{64 + nst[0]}, s56
        """)
        nst[0] += 1
    sst()
    for i in mine:
        if issue_after[i] == -1: issue(i)
    sst()
    lastm = mine[-1]
    for st in range(NSTEP):
        if st in mine:
            assert st in issued, (st, tiles[st])
            n = len(issued) - 1 - issued.index(st)
            p(f"s_waitcnt vmcnt({min(8 * n, 63)})")
            sst()
        p("s_barrier")
        if st == lastm: break
        for i in mine:
            if issue_after[i] == st: issue(i)
    for i in range(nst[0]):
        p(f"v_mov_b32 v9, s{64 + i}")
        p(f"buffer_store_dword v9, off, s[60:63], s58 offset:{4 * i}")
    p("s_endpgm")

p("""
s_sub_u32 s9, s3, 4
s_lshl_b32 s10, s9, 13
s_lshl_b32 s11, s9, 18
s_lshl_b32 s12, s7, 8
s_add_u32 s11, s11, s12         ; + h0*256
v_lshrrev_b32 v1, 4, v0         ; rr
v_and_b32 v2, 15, v0
v_lshlrev_b32 v3, 2, v1
v_xor_b32 v2, v2, v3
v_lshlrev_b32 v2, 4, v2
v_lshl_add_u32 v4, v1, 13, v2
v_add_u32 v5, 31744, v4
v_add_u32 v6, 63488, v4
v_add_u32 v7, 95232, v4
""")
loader('W', None)

p.label("LA_kv")
p("""
s_lshr_b32 s9, s3, 2
s_lshl_b32 s10, s9, 13          ; half*8192
s_lshl_b32 s11, s6, 5
s_add_u32 s11, s11, s7
s_lshl_b32 s11, s11, 17         ; (b*32+h0)*131072
s_add_u32 s11, s11, s10
v_lshrrev_b32 v1, 4, v0         ; rr
v_and_b32 v2, 15, v0
v_xor_b32 v3, v2, v1            ; c' ^ rr
v_lshlrev_b32 v3, 4, v3
v_lshl_add_u32 v4, v1, 8, v3
v_xor_b32 v5, 64, v4
v_xor_b32 v6, 0x80, v4
v_xor_b32 v7, 0xc0, v4
v_lshlrev_b32 v3, 2, v1
v_xor_b32 v2, v2, v3
v_lshlrev_b32 v2, 4, v2
v_lshl_add_u32 v8, v1, 8, v2
""")
loader('KV', None)

S0, O0, Q0, F0 = 128, 64, 32, 16
AD = 0
VKB, VVB, VWB, VXO, VM, VL, T0, T1 = 8, 9, 10, 11, 12, 13, 14, 15
p.label("LA_comp")
if NOCOMP:
    for st in range(NSTEP):
        p("s_barrier")
    p("s_endpgm")
p(f"""
v_mov_b32 v16, v0               ; lane
v_and_b32 v17, 31, v16          ; q / key
v_lshrrev_b32 v18, 5, v16       ; hi
v_and_b32 v19, 15, v16          ; t' = 4r+c
v_bfe_u32 v20, v16, 4, 1        ; dhalf
v_lshrrev_b32 v21, 2, v19       ; r
v_and_b32 v22, 3, v19           ; c
; K base
v_xor_b32 v23, v18, v19
v_lshlrev_b32 v23, 4, v23
v_lshl_add_u32 v23, v17, 8, v23
v_add_u32 v{VKB}, {KS[0]}, v23
v_lshl_add_u32 v23, v18, 2, v21
v_lshlrev_b32 v23, 8, v23
v_lshl_add_u32 v23, v21, 6, v23
v_lshl_add_u32 v24, v20, 5, v23
v_lshl_add_u32 v{VVB}, v22, 3, v24
v_lshl_add_u32 v23, v18, 3, v21
v_lshlrev_b32 v23, 8, v23
v_lshl_add_u32 v23, v21, 6, v23
v_lshl_add_u32 v23, v20, 5, v23
v_and_b32 v24, 1, v22
v_lshl_add_u32 v23, v24, 4, v23
v_lshrrev_b32 v24, 1, v22
v_lshl_add_u32 v{VWB}, v24, 3, v23
v_mul_u32_u24 v23, 1280, v17
v_lshl_add_u32 v{VXO}, v18, 4, v23
s_mul_i32 s12, s6, 3
s_add_u32 s12, s12, s3          ; qt
s_mul_i32 s13, s12, 40960
s_lshl_b32 s14, s12, 5
s_add_u32 s14, s14, s7
s_lshl_b32 s14, s14, 13
s_mov_b32 s15, {f32(SC)}
s_mov_b32 s52, 0
""")

def stream(items, D=4, DELAY=2):
    N = len(items)
    nxt = 0
    cur_tile = None
    bar_at = None
    def issue_reads(upto, n_now):
        nonlocal nxt, cur_tile, bar_at
        while nxt < min(upto, N):
            it = items[nxt]
            if it['tile'] != cur_tile:
                if n_now is not None and bar_at is None and nxt > 0:
                    bar_at = n_now + DELAY
                if bar_at is not None and n_now is not None and n_now < bar_at and nxt > n_now + 1:
                    return
                p("s_waitcnt lgkmcnt(0)")
                p("s_barrier")
                cur_tile = it['tile']; bar_at = None
                for t in it.get('pre', []): p(t)
            A = F0 + 4 * (nxt % D)
            for t in it['rd'](A): p(t)
            nxt += 1
    issue_reads(D, None)
    for n in range(N):
        it = items[n]
        p(it['mf'](F0 + 4 * (n % D)))
        issue_reads(n + D + 1, n)
        for t in it.get('fill', []): p(t)

def xreg(ks):
    return Q0 + 4 * ks if ks < 8 else S0 + 4 * (ks - 8)

p.label("LA_head")
stamp()
for ks in range(40 if not int(OPT.get('nox', 0)) else 0):
    p(f"buffer_load_dwordx4 {v(xreg(ks), 4)}, v{VXO}, s[32:35], s13 offen offset:{ks * 32}")
for T in range(4):
    p(f"v_xor_b32 v{T}, {T << 6}, v{VWB}")
    p(f"v_add_u32 v{4+T}, 0x10000, v{T}")
p(f"v_mov_b32 v{VM}, {f32(-1e30)}")
p(f"v_mov_b32 v{VL}, 0")
items = []
for t in range(10):
    slot = WSLOT[t]
    ab, so = (4, slot - 65536) if slot >= 65536 else (0, slot)
    for k4 in range(4):
        ks = 4 * t + k4
        for T in range(4):
            c = '0' if ks == 0 else v(O0 + 16 * T, 16)
            items.append(dict(
                tile=('W', t),
                mf=lambda A, T=T, ks=ks, c=c: f"v_mfma_f32_32x32x16_bf16 {v(O0 + 16*T, 16)}, {v(A, 4)}, {v(xreg(ks), 4)}, {c}",
                rd=lambda A, T=T, k4=k4, ab=ab, so=so: [
                    f"ds_read_b64_tr_b16 {v(A, 2)}, v{ab + T} offset:{so + 4096 * k4}",
                    f"ds_read_b64_tr_b16 {v(A + 2, 2)}, v{ab + T} offset:{so + 4096 * k4 + 1024}"]))
stream(items)
for T in range(4):
    for j in range(8):
        p(f"v_cvt_pk_bf16_f32 v{Q0 + 8*T + j}, v{O0 + 16*T + 2*j}, v{O0 + 16*T + 2*j + 1}")
p("s_mov_b32 s53, 0")
p.label("LA_unit")
stamp()
for ss in range(8):
    p(f"v_xor_b32 v{ss}, {ss << 5}, v{VKB}")
items = []
for n in range(8):
    j, a = n // 2, n % 2
    for ss in range(8):
        c = '0' if ss == 0 else v(S0 + 16 * n, 16)
        fill = []
        if n > 0 and ss >= 4:
            b = S0 + 16 * (n - 1) + 4 * (ss - 4)
            for e, tr in enumerate((T0, T1)):
                if n == 1 and ss == 4:
                    fill.append(f"v_max_f32 v{tr}, v{b + 2*e}, v{b + 2*e + 1}")
                else:
                    fill.append(f"v_max3_f32 v{tr}, v{tr}, v{b + 2*e}, v{b + 2*e + 1}")
        items.append(dict(
            tile=('K', j), fill=fill,
            mf=lambda A, n=n, ss=ss, c=c: f"v_mfma_f32_32x32x16_bf16 {v(S0 + 16*n, 16)}, {v(A, 4)}, {v(Q0 + 4*ss, 4)}, {c}",
            rd=lambda A, j=j, a=a, ss=ss: [f"ds_read_b128 {v(A, 4)}, v{ss} offset:{16384 * j + 8192 * a}"]))
stream(items)
stamp()
for T in range(4):
    p(f"v_xor_b32 v{T}, {T << 6}, v{VVB}")
for q4 in range(4):
    b = S0 + 16 * 7 + 4 * q4
    for e, tr in enumerate((T0, T1)):
        p(f"v_max3_f32 v{tr}, v{tr}, v{b + 2*e}, v{b + 2*e + 1}")
MC, AL = 4, 5
p(f"""
v_max_f32 v{T0}, v{T0}, v{T1}
v_mov_b32 v{T1}, v{T0}
v_permlane32_swap_b32 v{T0}, v{T1}
v_max3_f32 v{T0}, v{T0}, v{T1}, v{VM}
v_sub_f32 v{AL}, v{VM}, v{T0}
v_mul_f32 v{AL}, s15, v{AL}
v_exp_f32 v{AL}, v{AL}
v_mov_b32 v{VM}, v{T0}
v_mul_f32 v{MC}, s15, v{T0}
v_mul_f32 v{VL}, v{VL}, v{AL}
""")
def pops(f):
    r = S0 + 8 * f
    F = lambda i: f"v_fma_f32 v{r+i}, v{r+i}, s15, -v{MC}"
    E = lambda i: f"v_exp_f32 v{r+i}, v{r+i}"
    A = lambda i: f"v_add_f32 v{VL}, v{VL}, v{r+i}"
    C = lambda i: f"v_cvt_pk_bf16_f32 v{r+i}, v{r+2*i}, v{r+2*i+1}"
    return [F(0), F(1), E(0), E(1), F(2), F(3), E(2), E(3), A(0), A(1), C(0), F(4), F(5), E(4), E(5), A(2), A(3), C(1),
            F(6), F(7), E(6), E(7), A(4), A(5), C(2), A(6), A(7), C(3)]
for i in range(64):
    p(f"v_mul_f32 v{O0+i}, v{O0+i}, v{AL}")
for t in pops(0): p(t)
stamp()
items = []
for f in range(16):
    j, k4 = f // 4, f % 4
    nx = pops(f + 1) if f < 15 else []
    for T in range(4):
        items.append(dict(
            tile=('V', j), fill=nx[7 * T:7 * T + 7],
            mf=lambda A, T=T, f=f: f"v_mfma_f32_32x32x16_bf16 {v(O0 + 16*T, 16)}, {v(A, 4)}, {v(S0 + 8*f, 4)}, {v(O0 + 16*T, 16)}",
            rd=lambda A, T=T, j=j, k4=k4: [
                f"ds_read_b64_tr_b16 {v(A, 2)}, v{T} offset:{16384 * j + 4096 * k4}",
                f"ds_read_b64_tr_b16 {v(A + 2, 2)}, v{T} offset:{16384 * j + 4096 * k4 + 2048}"]))
stream(items)
p("""
s_add_u32 s53, s53, 1
s_cmp_lt_u32 s53, 2
s_cbranch_scc1 LA_unit
""")
stamp()
p(f"""
v_mov_b32 v{T1}, v{VL}
v_permlane32_swap_b32 v{VL}, v{T1}
v_add_f32 v{VL}, v{VL}, v{T1}
v_rcp_f32 v{VL}, v{VL}
v_mbcnt_lo_u32_b32 v{T0}, -1, 0
v_mbcnt_hi_u32_b32 v{T0}, -1, v{T0}
v_lshlrev_b32 v{T0}, 4, v{T0}
s_add_u32 s54, s14, 4096
""")
for f in range(8):
    r = O0 + 8 * f
    for i in range(8): p(f"v_mul_f32 v{r+i}, v{r+i}, v{VL}")
    for i in range(4): p(f"v_cvt_pk_bf16_f32 v{r+i}, v{r+2*i}, v{r+2*i+1}")
    p(f"buffer_store_dwordx4 {v(r, 4)}, v{T0}, s[48:51], {'s14' if f < 4 else 's54'} offen offset:{(f % 4) * 1024}")
p("""
s_add_u32 s14, s14, 8192
s_add_u32 s52, s52, 1
s_cmp_lt_u32 s52, 2
s_cbranch_scc1 LA_head
""")
stamp()
p.label("LA_end")
p("s_endpgm")

kernel_head(KB)
p("""
s_cmp_ge_u32 s2, 240
s_cbranch_scc1 LB_end
s_load_dwordx16 s[16:31], s[0:1], 0
v_lshrrev_b32 v1, 6, v0
v_and_b32 v0, 63, v0
v_readfirstlane_b32 s3, v1
s_and_b32 s4, s2, 7
s_lshr_b32 s5, s2, 3            ; i 0..29
s_mul_i32 s6, s5, 205
s_lshr_b32 s6, s6, 11           ; i/10
s_mul_i32 s7, s6, 10
s_sub_u32 s7, s5, s7            ; nt
s_mul_i32 s4, s4, 3
s_add_u32 s6, s6, s4            ; mt
s_waitcnt lgkmcnt(0)
""")
srd(32, 24, 4096 * 640 * 2)
srd(36, 26, 16 * 96 * 640 * 2)
srd(48, 30, 48 * 32 * 8192)
ACC, OF, FB = 0, 64, 192
WA0, WA1, DV, LO, X0 = 224, 225, 226, 230, 231
p(f"""
v_mov_b32 v{X0}, v0
s_lshl_b32 s8, s3, 14
v_lshrrev_b32 v1, 3, v{X0}      ; rr
v_and_b32 v2, 7, v{X0}
v_bfe_u32 v3, v{X0}, 4, 1
v_lshlrev_b32 v3, 2, v3
v_xor_b32 v2, v2, v3
v_lshlrev_b32 v2, 4, v2
v_mul_u32_u24 v1, 1280, v1
v_add_u32 v{DV}, v1, v2
v_add_u32 v{DV+1}, 9216, v{DV}
v_add_u32 v{DV+2}, 18432, v{DV}
v_add_u32 v{DV+3}, 27648, v{DV}
v_lshrrev_b32 v1, 5, v{X0}      ; hi
v_bfe_u32 v2, v{X0}, 2, 2       ; r
v_and_b32 v3, 3, v{X0}          ; c
v_bfe_u32 v4, v{X0}, 4, 1       ; dhalf
v_lshl_add_u32 v5, v1, 2, v2
v_lshlrev_b32 v5, 7, v5
v_lshrrev_b32 v6, 1, v2
v_lshl_add_u32 v5, v6, 6, v5
v_and_b32 v6, 1, v3
v_lshl_add_u32 v5, v6, 5, v5
v_lshl_add_u32 v5, v4, 4, v5
v_lshrrev_b32 v6, 1, v3
v_lshl_add_u32 v5, v6, 3, v5
v_add_u32 v{WA0}, s8, v5
v_xor_b32 v{WA1}, 64, v{WA0}
v_lshlrev_b32 v{LO}, 4, v{X0}
s_mul_i32 s9, s3, 655360
s_lshl_b32 s10, s7, 7
s_add_u32 s9, s9, s10
s_lshl_b32 s10, s6, 6
s_lshl_b32 s11, s3, 2
s_add_u32 s10, s10, s11
s_lshl_b32 s10, s10, 13
""")
def dma_chunk(ch):
    for g in range(2):
        p(f"s_add_u32 s12, s8, {(ch % 2) * 8192 + g * 4096}")
        p("s_mov_b32 m0, s12")
        p(f"s_add_u32 s13, s9, {(64 * ch + 32 * g) * 1280}")
        for q in range(4):
            p(f"buffer_load_dwordx4 v{DV+q}, s[32:35], s13 offen offset:{q*1024} lds")
def o_chunk(ch):
    for a in range(2):
        p(f"s_add_u32 s13, s10, {a * 262144 + ch * 4096}")
        for j in range(4):
            p(f"buffer_load_dwordx4 {v(OF + 32 * (ch % 4) + 16 * a + 4 * j, 4)}, v{LO}, s[48:51], s13 offen offset:{j*1024}")
order = []
def D(ch): dma_chunk(ch); order.append(('D', ch))
def O(ch): o_chunk(ch); order.append(('O', ch))
D(0); O(0); D(1); O(1); O(2); O(3)
for ch in range(8):
    n = len(order) - 1 - order.index(('D', ch))
    p(f"s_waitcnt vmcnt({8 * n})")
    for k4 in range(4):
        for T in range(2):
            A = FB + 4 * (2 * k4 + T)
            wa = WA0 if T == 0 else WA1
            p(f"ds_read_b64_tr_b16 {v(A, 2)}, v{wa} offset:{(ch % 2) * 8192 + 2048 * k4}")
            p(f"ds_read_b64_tr_b16 {v(A + 2, 2)}, v{wa} offset:{(ch % 2) * 8192 + 2048 * k4 + 1024}")
    for k4 in range(4):
        for T in range(2):
            A = FB + 4 * (2 * k4 + T)
            for a in range(2):
                acc = ACC + 16 * (2 * T + a)
                c = '0' if (ch == 0 and k4 == 0) else v(acc, 16)
                p(f"v_mfma_f32_32x32x16_bf16 {v(acc, 16)}, {v(A, 4)}, {v(OF + 32 * (ch % 4) + 16 * a + 4 * k4, 4)}, {c}")
            if k4 == 3 and T == 1:
                pass
        if k4 == 3:
            if ch + 2 < 8: D(ch + 2)
            if ch + 4 < 8: O(ch + 4)
p(f"v_add_u32 v{WA0}, s8, v{LO}")
for t in range(16):
    p(f"ds_write_b128 v{WA0}, {v(ACC + 4 * t, 4)} offset:{t * 1024}")
p(f"""
s_lshl_b32 s11, s3, 11          ; (tile*4+2pair)*1024 = wv*2048
v_add_u32 v{WA1}, s11, v{LO}
v_add_u32 v{WA0}, 0x10000, v{WA1}
s_waitcnt lgkmcnt(0)
s_barrier
""")
for src in range(8):
    wa = WA1 if src < 4 else WA0
    for i in range(2):
        p(f"ds_read_b128 {v(64 + 8 * src + 4 * i, 4)}, v{wa} offset:{(src % 4) * 16384 + i * 1024}")
p(f"""
s_lshr_b32 s11, s3, 2           ; T
s_lshr_b32 s12, s3, 1
s_and_b32 s12, s12, 1           ; a
s_and_b32 s13, s3, 1            ; pair
s_lshl_b32 s14, s6, 1
s_add_u32 s14, s14, s12
s_mul_i32 s14, s14, 40960       ; row0*1280
s_lshl_b32 s15, s7, 7
s_add_u32 s14, s14, s15
s_lshl_b32 s15, s11, 6
s_add_u32 s14, s14, s15
s_lshl_b32 s15, s13, 4
s_add_u32 s14, s14, s15
v_and_b32 v1, 31, v{X0}
v_mul_u32_u24 v1, 1280, v1
v_lshrrev_b32 v2, 5, v{X0}
v_lshl_add_u32 v1, v2, 5, v1
""")
for step in (1, 2, 4):
    for src in range(0, 8, 2 * step):
        for e in range(8):
            p(f"v_add_f32 v{64 + 8*src + e}, v{64 + 8*src + e}, v{64 + 8*(src+step) + e}")
for i in range(4):
    p(f"v_cvt_pk_bf16_f32 v{64+i}, v{64+2*i}, v{64+2*i+1}")
p("buffer_store_dwordx4 v[64:67], v1, s[36:39], s14 offen")
p.label("LB_end")
p("s_endpgm")

def kd(name, vg, sg):
    return f""".p2align 6
.amdhsa_kernel {name}
  .amdhsa_next_free_vgpr {vg}
  .amdhsa_next_free_sgpr {sg}
  .amdhsa_accum_offset {vg}
  .amdhsa_group_segment_fixed_size 0
  .amdhsa_kernarg_size 64
  .amdhsa_user_sgpr_count 2
  .amdhsa_user_sgpr_kernarg_segment_ptr 1
  .amdhsa_system_sgpr_workgroup_id_x 1
.end_amdhsa_kernel
"""
launch = f"; @launch kernel={KA} grid=(256,1,1) block=(512,1,1) lds=163840\n"
if not ONLYA:
    launch += f"; @launch kernel={KB} grid=(240,1,1) block=(512,1,1) lds=131072\n"
src = HDR + launch + '.amdgcn_target "amdgcn-amd-amdhsa--gfx950"\n.text\n' + p.text() + '.section .rodata,"a"\n' + kd(KA, 256, 102) + kd(KB, 232, 64)
open(sys.argv[1], 'w').write(src)
print("nops inserted:", p.nops_inserted, "lines:", len(p.out))
```

```python
import re

_REG = re.compile(r'^(-)?(?:abs\()?([vsa])(?:(\d+)|\[(\d+):(\d+)\])\)?$')

def regs_of(tok):
    tok = tok.strip()
    if tok in ('vcc', 'exec', 'm0', 'scc'):
        return [tok]
    if tok in ('vcc_lo', 'vcc_hi'):
        return ['vcc']
    if tok in ('exec_lo', 'exec_hi'):
        return ['exec']
    m = _REG.match(tok)
    if not m:
        return []
    k = m.group(2)
    if m.group(3) is not None:
        return [(k, int(m.group(3)))]
    return [(k, i) for i in range(int(m.group(4)), int(m.group(5)) + 1)]

TRANS = ('v_exp_f32', 'v_log_f32', 'v_rcp_f32', 'v_rsq_f32', 'v_sqrt_f32', 'v_sin_f32', 'v_cos_f32')

class Inst:
    def __init__(self, text):
        self.text = text
        body = text.split(';')[0].strip()
        parts = body.split(None, 1)
        self.op = parts[0]
        rest = parts[1] if len(parts) > 1 else ''
        ops = [t.strip() for t in rest.split(',')] if rest else []
        mods = []
        if ops:
            last = ops[-1].split()
            ops[-1] = last[0] if last else ''
            mods = last[1:]
        self.ops, self.mods = ops, mods
        op = self.op
        R = lambda i: regs_of(ops[i]) if i < len(ops) else []
        allr = lambda s=0: [r for i in range(s, len(ops)) for r in regs_of(ops[i])]
        self.rd, self.wr, self.kind = [], [], 'other'
        self.mf = None
        self.states = 1
        if op.startswith('v_mfma'):
            self.kind = 'mfma'
            self.mf = (R(0), R(1), R(2), R(3))
            self.wr = R(0); self.rd = R(1) + R(2) + R(3)
            self.passes = 8 if '32x32' in op else 4
        elif op.startswith('v_cmp'):
            self.kind = 'valu'; self.wr = R(0); self.rd = allr(1)
        elif op.startswith('v_permlane') and 'swap' in op:
            self.kind = 'valu'; self.wr = R(0) + R(1); self.rd = R(0) + R(1)
        elif op.startswith('v_'):
            self.kind = 'trans' if op.split('_e')[0] in TRANS else 'valu'
            self.wr = R(0); self.rd = allr(1)
            if op.startswith('v_fmac') or op.startswith('v_pk_fmac') or op.startswith('v_writelane'):
                self.rd = self.rd + R(0)
            if op.startswith('v_add_co') or op.startswith('v_sub_co') or op.startswith('v_addc_co'):
                self.wr = R(0) + R(1); self.rd = allr(2)
        elif op.startswith('ds_read') or op.startswith('ds_bpermute') or op.startswith('ds_swizzle') or '_rtn_' in op:
            self.kind = 'ds'; self.wr = R(0); self.rd = allr(1)
        elif op.startswith('ds_'):
            self.kind = 'ds'; self.rd = allr(0)
        elif op.startswith('buffer_load') or op.startswith('global_load'):
            self.kind = 'vmem'
            if 'lds' in mods or 'lds' in op:
                self.rd = allr(0) + ['m0']; self.dma = True
            else:
                self.wr = R(0); self.rd = allr(1)
        elif op.startswith('buffer_store') or op.startswith('global_store'):
            self.kind = 'vmem'; self.rd = allr(0)
            self.store_data = R(0) if op.startswith('buffer') else R(1)
            self.wide = op.endswith('x4') or op.endswith('x3')
        elif op.startswith('buffer_atomic'):
            self.kind = 'vmem'; self.rd = allr(0)
            if 'sc0' in mods: self.wr = R(0)
        elif op.startswith('global_atomic'):
            self.kind = 'vmem'
            if 'sc0' in mods:
                self.wr = R(0); self.rd = allr(1)
            else:
                self.rd = allr(0)
        elif op.startswith('buffer_wbl2') or op.startswith('buffer_inv'):
            self.kind = 'vmem'
        elif op.startswith('s_load') or op.startswith('s_memtime') or op.startswith('s_memrealtime'):
            self.kind = 'smem'; self.wr = R(0); self.rd = allr(1)
        elif op == 's_nop':
            self.states = int(ops[0], 0) + 1
        elif op.startswith('s_cmp') or op.startswith('s_bitcmp'):
            self.kind = 'salu'; self.rd = allr(0); self.wr = ['scc']
        elif op in ('s_waitcnt', 's_barrier', 's_endpgm', 's_sleep', 's_setprio', 's_branch') or op.startswith('s_cbranch'):
            self.kind = 'ctl'
        elif op.startswith('s_'):
            self.kind = 'salu'; self.wr = R(0) + ['scc']; self.rd = allr(1)
        else:
            raise ValueError('unknown op ' + text)

class TSet(set):
    tag = None

class Prog:
    def __init__(self):
        self.out = []
        self.reset_state()
        self.nops_inserted = 0
    def reset_state(self):
        self.pos = 0
        self.vm = []
        self.cur_tag = None
        self.lg = []
        self.w_valu = {}; self.w_trans = {}; self.w_mfma = {}; self.r_mfc = {}; self.w_salu = {}
        self.st_data = {}
    def raw(self, line):
        self.out.append(line)
    def comment(self, c):
        self.out.append('    ; ' + c)
    def _put(self, text, states=1):
        self.out.append('    ' + text)
        self.pos += states
    def _pad(self, n):
        self.nops_inserted += n
        while n > 0:
            k = min(n, 16)
            self._put('s_nop %d' % (k - 1), k)
            n -= k
    def _need(self, ins):
        need = 0
        pos = self.pos
        def req(tbl, regs, ws):
            nonlocal need
            for r in regs:
                if r in tbl:
                    d = pos - tbl[r] - 1
                    if ws - d > need: need = ws - d
        k = ins.kind
        isv = k in ('valu', 'trans')
        if k == 'mfma':
            d, a, b, c = ins.mf
            req(self.w_valu, a + b + c, 2)
            for r in a + b:
                if r in self.w_mfma:
                    p, ps, dd = self.w_mfma[r]
                    ws = {4: 8, 8: 12}[ps]; need = max(need, ws - (pos - p - 1))
            for r in c:
                if r in self.w_mfma:
                    p, ps, dd = self.w_mfma[r]
                    if dd == c and ps == ins.passes: continue
                    ws = {4: 6, 8: 10}[ps]; need = max(need, ws - (pos - p - 1))
            for r in d:
                if r in self.w_mfma and r not in c:
                    p, ps, dd = self.w_mfma[r]
                    ws = {4: 6, 8: 10}[ps]; need = max(need, ws - (pos - p - 1))
            req(self.w_valu, ['exec'], 4)
        else:
            if isv or k in ('ds', 'vmem'):
                for r in ins.rd + ins.wr:
                    if r in self.w_mfma:
                        p, ps, dd = self.w_mfma[r]
                        ws = {4: 8, 8: 12}[ps]; need = max(need, ws - (pos - p - 1))
            if isv:
                for r in ins.wr:
                    if r in self.r_mfc:
                        p, ps = self.r_mfc[r]
                        ws = {4: 3, 8: 7}[ps]; need = max(need, ws - (pos - p - 1))
                if k != 'trans':
                    req(self.w_trans, ins.rd + ins.wr, 1)
                sregs = [r for r in ins.rd if r == 'vcc' or (isinstance(r, tuple) and r[0] == 's')]
                req(self.w_valu, sregs, 2)
                if ins.op.startswith('v_cndmask') : req(self.w_valu, ['vcc'], 2)
                if ins.op.startswith('v_permlane') or 'dpp' in ins.op:
                    req(self.w_valu, ins.rd, 2)
                if ins.op.startswith('v_readfirstlane') or ins.op.startswith('v_readlane'):
                    req(self.w_valu, ins.rd, 1)
                    req(self.w_valu, ['exec'], 4)
                req(self.st_data, ins.wr, 2)
            else:
                req(self.st_data, ins.wr, 1)
            if k == 'vmem':
                sregs = [r for r in ins.rd if isinstance(r, tuple) and r[0] == 's']
                req(self.w_valu, sregs, 5)
                if 'm0' in ins.rd: req(self.w_salu, ['m0'], 1)
            if k == 'salu' or k == 'ctl':
                sregs = [r for r in ins.rd if r == 'vcc' or (isinstance(r, tuple) and r[0] == 's')]
                req(self.w_valu, sregs, 1)
        return need
    def _waits(self, ins):
        touched = set(ins.rd) | set(ins.wr)
        vm_n = None; lg_n = None
        for i, d in enumerate(self.vm):
            if d & touched: vm_n = len(self.vm) - 1 - i
        for i, d in enumerate(self.lg):
            if d & touched: lg_n = len(self.lg) - 1 - i
        if vm_n is not None or lg_n is not None:
            self.wait(vm=vm_n, lg=lg_n)
    def wait(self, vm=None, lg=None):
        s = []
        if vm is not None:
            vm = min(vm, 63)
            s.append('vmcnt(%d)' % vm)
            if len(self.vm) > vm: self.vm = self.vm[len(self.vm) - vm:] if vm else []
        if lg is not None:
            lg = min(lg, 15)
            s.append('lgkmcnt(%d)' % lg)
            if len(self.lg) > lg: self.lg = self.lg[len(self.lg) - lg:] if lg else []
        self._put('s_waitcnt ' + ' '.join(s))
    def wait_tag(self, tags):
        n = None
        for i, d in enumerate(self.vm):
            if getattr(d, 'tag', None) in tags: n = len(self.vm) - 1 - i
        if n is not None: self.wait(vm=n)
    def __call__(self, text):
        for line in text.strip().split('\n'):
            line = line.strip()
            if not line or line.startswith(';'):
                if line: self.out.append('    ' + line)
                continue
            self.emit(line)
    def emit(self, text):
        ins = Inst(text)
        if ins.op == 's_waitcnt':
            vm = re.search(r'vmcnt\((\d+)\)', text); lg = re.search(r'lgkmcnt\((\d+)\)', text)
            self.wait(int(vm.group(1)) if vm else None, int(lg.group(1)) if lg else None)
            return
        if ins.kind == 'ctl' and (ins.op.startswith('s_cbranch') or ins.op == 's_branch'):
            self.boundary()
        self._waits(ins)
        n = self._need(ins)
        if n > 0: self._pad(n)
        p = self.pos
        self._put(text, ins.states)
        k = ins.kind
        for r in ins.wr:
            for t in (self.w_valu, self.w_trans, self.w_mfma, self.w_salu):
                t.pop(r, None)
        if k == 'mfma':
            for r in ins.wr: self.w_mfma[r] = (p, ins.passes, ins.mf[0])
            for r in ins.mf[3]: self.r_mfc[r] = (p, ins.passes)
        elif k in ('valu', 'trans'):
            for r in ins.wr:
                self.w_valu[r] = p
                if k == 'trans': self.w_trans[r] = p
        elif k == 'salu':
            for r in ins.wr: self.w_salu[r] = p
        elif k == 'ds':
            self.lg.append(set(ins.wr))
        elif k == 'smem':
            self.lg.append(set(ins.wr)); self.smem_pending = True
        elif k == 'vmem':
            e = TSet(ins.wr); e.tag = self.cur_tag; self.vm.append(e)
            if getattr(ins, 'wide', False):
                for r in ins.store_data: self.st_data[r] = p
    def boundary(self):
        assert not any(self.vm), 'vmem register loads pending at control-flow boundary'
        assert not any(self.lg), 'lds register loads pending at control-flow boundary'
        need = 0
        for r, (p, ps, dd) in self.w_mfma.items():
            need = max(need, {4: 8, 8: 12}[ps] - (self.pos - p - 1))
        for r, p in self.w_valu.items():
            ws = 5 if (isinstance(r, tuple) and r[0] == 's') or r in ('vcc', 'exec') else 2
            need = max(need, ws - (self.pos - p - 1))
        for r, p in self.st_data.items():
            need = max(need, 2 - (self.pos - p - 1))
        for r, p in self.w_salu.items():
            if r == 'm0': need = max(need, 1 - (self.pos - p - 1))
        if need > 0: self._pad(need)
        self.w_valu = {}; self.w_trans = {}; self.w_mfma = {}; self.r_mfc = {}; self.w_salu = {}; self.st_data = {}
        self.vm = []; self.lg = []
    def label(self, name):
        self.boundary()
        self.out.append(name + ':')
    def text(self):
        return '\n'.join(self.out) + '\n'

def v(n, c=1):
    return 'v%d' % n if c == 1 else 'v[%d:%d]' % (n, n + c - 1)
def s(n, c=1):
    return 's%d' % n if c == 1 else 's[%d:%d]' % (n, n + c - 1)
```

```python
import sys, struct
from asmgen import *

OPT = dict(a.split('=') for a in sys.argv[2:]) if len(sys.argv) > 2 else {}
KPOL = OPT.get('kpol', '').replace('+', ' ')
VPOL = OPT.get('vpol', '').replace('+', ' ')
ONLYA = int(OPT.get('onlya', 0))
STAMP = int(OPT.get('stamp', 0))
LOOK = int(OPT.get('look', 5))
UOFF = int(OPT.get('uoff', 0))
PRIO = int(OPT.get('prio', 1))

KA = "mha_attn_kernel"
KB = "mha_oproj_kernel"
HDR = open('standalone__mha_block_cached__near_ridge.s.ref').read().split('; Override')[0]
SC = 128 ** -0.5 * 1.4426950408889634
def f32(x): return '0x%08x' % struct.unpack('<I', struct.pack('<f', x))[0]

WFR = 0x1000000
WS_BYTES = WFR + 5242880
K16 = 16384
NR = 6
RS = [K16 * i for i in range(NR)]
GS = [K16 * (NR + i) for i in range(4)]

T = {}
XA = [49152, 73728, 49152, 73728, 49152]; XSTEP = [0, 2, 4, 6, 8]
XISS = [int(x) for x in OPT.get('xiss', '-1,-1,1,3,5').split(',')]
WISS = [int(x) for x in OPT.get('wiss', '-1,-1,0,0,2,3,4,5,6,7').split(',')]
TISS = [int(x) for x in OPT.get('tiss', '4,6,7').split(',')]
for j in range(5): T['X%d' % j] = dict(kind='X', j=j, addr=XA[j], size=24576, step=XSTEP[j], minissue=XISS[j])
for t in range(10): T['W%d' % t] = dict(kind='W', h=0, idx=t, addr=GS[t % 4], size=K16, step=t, minissue=WISS[t])
USTEP = [13, 14, 15, 16, 17, 21, 22, 23, 24, 25] if UOFF == 0 else [10 + UOFF + t for t in range(10)]
ULOOK = int(OPT.get('ulook', 3))
for t in range(10): T['U%d' % t] = dict(kind='W', h=1, idx=t, addr=GS[(t + 2) % 4], size=K16, step=USTEP[t], minissue=USTEP[t] - ULOOK)
for n in range(32):
    T['T%d' % n] = dict(kind='K' if n % 8 < 4 else 'V', h=n // 16, idx=4 * ((n // 8) % 2) + n % 4,
                        addr=RS[n % NR], size=K16, step=10 + n, minissue=TISS[n] if n < len(TISS) else (10 + n - LOOK))
NSTEP = 42
fifo = sorted(T, key=lambda n: (T[n]['step'], n[0] != 'T'))
for i, n in enumerate(fifo):
    t = T[n]; iss = t.get('minissue', -1)
    for m in fifo[:i]:
        o = T[m]
        if o['addr'] < t['addr'] + t['size'] and t['addr'] < o['addr'] + o['size']:
            assert o['step'] < t['step'], (m, n)
            iss = max(iss, o['step'] + 1)
    t['issue'] = iss
    assert iss < t['step'], (n, t)
if int(OPT.get('show', 0)):
    for n in fifo: print(n, T[n])

p = Prog()
def kernel_head(name):
    p.raw(".globl %s\n.p2align 8\n.type %s,@function\n%s:" % (name, name, name))
    p.reset_state()
def srd(d, lo, nbytes):
    p(f"""
    s_mov_b32 s{d}, s{lo}
    s_and_b32 s{d+1}, s{lo+1}, 0xffff
    s_mov_b32 s{d+2}, {nbytes}
    s_mov_b32 s{d+3}, 0x20000
    """)
def stamp(vr):
    if not STAMP: return
    p(f"""
    s_memtime s[56:57]
    s_waitcnt lgkmcnt(0)
    v_mov_b32 v{vr}, s56
    buffer_store_dword v{vr}, off, s[60:63], s58
    s_add_u32 s58, s58, 4
    """)
def rstamp(vr, slot):
    if not STAMP: return
    p(f"""
    s_memrealtime s[56:57]
    s_waitcnt lgkmcnt(0)
    v_mov_b32 v{vr}, s56
    s_andn2_b32 s57, s58, 0xff
    buffer_store_dword v{vr}, off, s[60:63], s57 offset:{slot * 4}
    """)
def stamp_init():
    if not STAMP: return
    srd(60, 30, 0x3000000)
    p("""
    s_lshl_b32 s58, s2, 3
    s_add_u32 s58, s58, s3
    s_lshl_b32 s58, s58, 8
    s_add_u32 s58, s58, 0x2000000
    """)

kernel_head(KA)
p("""
s_cmp_ge_u32 s2, 256
s_cbranch_scc1 LA_end
s_load_dwordx16 s[16:31], s[0:1], 0
v_lshrrev_b32 v1, 6, v0
v_and_b32 v0, 63, v0
v_readfirstlane_b32 s3, v1
s_and_b32 s4, s2, 7
s_lshr_b32 s5, s2, 3
s_and_b32 s6, s4, 1
s_lshl_b32 s6, s6, 3
s_and_b32 s7, s5, 7
s_add_u32 s6, s6, s7            ; b
s_lshr_b32 s7, s4, 1
s_lshl_b32 s7, s7, 2
s_lshr_b32 s8, s5, 3
s_add_u32 s7, s7, s8
s_lshl_b32 s7, s7, 1            ; h0
s_and_b32 s8, s3, 3             ; i
s_lshr_b32 s9, s3, 2
""")
if int(OPT.get('cpf', 0)):
    p("""
    s_getpc_b64 s[12:13]
    v_lshlrev_b32 v2, 4, v0
    v_lshl_add_u32 v2, v1, 12, v2
    """)
    for q in range(4):
        p.raw(f"    global_load_dwordx4 v[{240+4*q}:{243+4*q}], v2, s[12:13] offset:{q*1024}")
p("s_waitcnt lgkmcnt(0)")
srd(48, 30, WS_BYTES)
stamp_init()
ROT = int(OPT.get('rot', 1))
p(f"""
s_lshr_b32 s12, s7, 1
s_add_u32 s12, s12, s6          ; b + pair  (0..30)
s_mul_i32 s12, s12, {ROT}
s_mul_i32 s13, s12, 52
s_lshr_b32 s13, s13, 8          ; /5
s_mul_i32 s13, s13, 5
s_sub_u32 s97, s12, s13         ; rot
""")
for j in range(1, 5):
    p(f"""
    s_add_u32 s{97+j}, s{96+j}, 1
    s_cmp_eq_u32 s{97+j}, 5
    s_cselect_b32 s{97+j}, 0, s{97+j}
    """)
p("""
s_cmp_lt_u32 s8, 3
s_cbranch_scc1 LA_comp
""")
srd(32, 16, 16 * 96 * 640 * 2)
srd(36, 18, 67108864)
srd(40, 20, 67108864)
srd(44, 22, 640 * 4096 * 2)
srd(52, 24, 4096 * 640 * 2)
p("""
s_lshl_b32 s10, s9, 13          ; half*8192
s_lshl_b32 s11, s6, 5
s_add_u32 s11, s11, s7
s_lshl_b32 s11, s11, 17
s_add_u32 s11, s11, s10
s_lshl_b32 s14, s9, 18
s_lshl_b32 s12, s7, 8
s_add_u32 s14, s14, s12
s_mul_i32 s15, s6, 122880
s_mul_i32 s12, s9, 61440
s_add_u32 s15, s15, s12
s_mul_i32 s4, s9, 12288
v_lshrrev_b32 v1, 4, v0         ; rr
v_and_b32 v2, 15, v0
v_xor_b32 v3, v2, v1            ; c' ^ rr
v_lshlrev_b32 v3, 4, v3
v_lshl_add_u32 v4, v1, 8, v3
v_xor_b32 v5, 64, v4
v_xor_b32 v6, 0x80, v4
v_xor_b32 v7, 0xc0, v4
v_mul_u32_u24 v17, 1280, v1
v_add_u32 v13, v17, v3
v_xor_b32 v14, 64, v3
v_xor_b32 v15, 0x80, v3
v_xor_b32 v16, 0xc0, v3
v_add_u32 v14, v17, v14
v_add_u32 v15, v17, v15
v_add_u32 v16, v17, v16
v_add_u32 v14, 4096, v14
v_add_u32 v15, 8192, v15
v_add_u32 v16, 12288, v16
v_lshlrev_b32 v3, 2, v1
v_xor_b32 v2, v2, v3
v_lshlrev_b32 v2, 4, v2
v_lshl_add_u32 v8, v1, 8, v2
v_lshl_add_u32 v9, v1, 13, v2
v_add_u32 v10, 31744, v9
v_add_u32 v11, 63488, v9
v_add_u32 v12, 95232, v9
""")
def issue(n):
    t = T[n]; p.cur_tag = n
    k = t['kind']
    for g in range(3 if k == 'X' else 2):
        p(f"s_add_u32 s12, {'s4' if k == 'X' else 's10'}, {t['addr'] + g * 4096}")
        p("s_mov_b32 m0, s12")
        if k == 'W':
            p(f"s_lshl_b32 s13, s{97 + t['idx'] // 2}, 20")
            p(f"s_add_u32 s13, s13, s14")
            p(f"s_add_u32 s13, s13, {t['h'] * 256 + (64 * (t['idx'] % 2) + 16 * g) * 8192}")
        elif k == 'X':
            p(f"s_add_u32 s13, s15, {t['j'] * 256 + 16 * g * 1280}")
        else:
            p(f"s_add_u32 s13, s11, {t['h'] * 131072 + t['idx'] * 16384 + g * 4096}")
        for q in range(4):
            vr, sd, pol = {'K': (4 + q, 36, KPOL), 'V': (8, 40, VPOL), 'W': (9 + q, 44, ''), 'X': (13 + q, 32, '')}[k]
            p(f"buffer_load_dwordx4 v{vr}, s[{sd}:{sd+3}], s13 offen offset:{q*1024} {pol} lds")
    p.cur_tag = None
nst = [0]
def sst():
    if not STAMP or nst[0] >= 33: return
    p(f"""
    s_memtime s[56:57]
    s_waitcnt lgkmcnt(0)
    s_mov_b32 s{64 + nst[0]}, s56
    """)
    nst[0] += 1
sst()
NPACE = 0
for n in fifo:
    if T[n]['issue'] == -1 and T[n]['kind'] != 'X':
        issue(n)
        if n in ('W0',):
            p("s_barrier"); NPACE += 1
p("""
v_and_b32 v1, 15, v0            ; i
v_lshrrev_b32 v2, 4, v0         ; kg
v_and_b32 v3, 1, v2
v_lshlrev_b32 v3, 4, v3
v_lshrrev_b32 v17, 1, v2
v_lshl_add_u32 v3, v17, 2, v3   ; 16(kg%2)+4(kg/2)
v_mul_u32_u24 v3, 1280, v3
v_lshrrev_b32 v17, 2, v1
v_and_b32 v18, 3, v1
v_lshl_add_u32 v17, v17, 3, v18 ; 8(i/4)+i%4
v_lshl_add_u32 v20, v17, 1, v3  ; j<4
v_add_u32 v21, 10240, v20
v_lshl_add_u32 v22, v1, 1, v3   ; j=4
v_add_u32 v23, 10240, v22
v_lshlrev_b32 v24, 4, v0
s_lshr_b32 s5, s2, 1            ; kappa
s_and_b32 s12, s2, 1
s_lshl_b32 s12, s12, 2
s_lshl_b32 s13, s9, 1
s_add_u32 s12, s12, s13
s_mul_i32 s59, s5, 40960
s_mul_i32 s13, s12, 160
s_add_u32 s59, s59, s13
s_lshl_b32 s12, s12, 7
s_add_u32 s12, s12, s5
s_mul_i32 s5, s12, 5120
""")
p(f"s_add_u32 s5, s5, {WFR}")
def wo_load(f):
    nl, j = f // 5, f % 5
    col = nl * 160 + (64 * (j // 2) + 8 * (j % 2) if j < 4 else 128)
    p(f"s_add_u32 s13, s59, {col}")
    for e in range(8):
        vr = (20 if j < 4 else 22) + e // 4
        p(f"buffer_load_ushort v{32 + 8 * f + e}, v{vr}, s[52:55], s13 offen offset:{(e % 4) * 1280}")
def wo_store(f):
    nl, j = f // 5, f % 5
    r = 32 + 8 * f
    for e in range(4):
        p(f"v_lshl_or_b32 v{r + e}, v{r + 2*e + 1}, 16, v{r + 2*e}")
    p(f"s_add_u32 s13, s5, {nl * 128 * 5120 + j * 1024}")
    p(f"buffer_store_dwordx4 {v(r, 4)}, v24, s[48:51], s13 offen")
WO0 = int(OPT.get('wo0', 12))
for st in range(NSTEP):
    p.wait_tag([n for n in T if T[n]['step'] == st])
    sst()
    p("s_barrier")
    if STAMP == 2: sst()
    for n in fifo:
        if T[n]['issue'] == st and T[n]['kind'] != 'X': issue(n)
    if WO0 <= st < WO0 + 5:
        wo_load(2 * (st - WO0)); wo_load(2 * (st - WO0) + 1)
    if WO0 + 6 <= st < WO0 + 11:
        wo_store(2 * (st - WO0 - 6)); wo_store(2 * (st - WO0 - 6) + 1)
if STAMP:
    for i in range(nst[0]):
        p(f"v_mov_b32 v9, s{64 + i}")
        p(f"buffer_store_dword v9, off, s[60:63], s58 offset:{4 * i}")
p("s_endpgm")

S0, O0, Q0, F0 = 128, 64, 32, 16
VKB, VVB, VWB, VXB, VM, VL, T0, T1 = 8, 9, 10, 11, 12, 13, 14, 15
p.label("LA_comp")
p(f"""
v_mov_b32 v16, v0               ; lane
v_and_b32 v17, 31, v16          ; q / key
v_lshrrev_b32 v18, 5, v16       ; hi
v_and_b32 v19, 15, v16          ; t' = 4r+c
v_bfe_u32 v20, v16, 4, 1        ; dhalf
v_lshrrev_b32 v21, 2, v19       ; r
v_and_b32 v22, 3, v19           ; c
v_xor_b32 v23, v18, v19
v_lshlrev_b32 v23, 4, v23
v_lshl_add_u32 v{VKB}, v17, 8, v23
s_lshl_b32 s12, s8, 13
s_add_u32 s12, s12, 49152
v_add_u32 v{VXB}, s12, v{VKB}
v_lshl_add_u32 v23, v18, 2, v21
v_lshlrev_b32 v23, 8, v23
v_lshl_add_u32 v23, v21, 6, v23
v_lshl_add_u32 v24, v20, 5, v23
v_lshl_add_u32 v{VVB}, v22, 3, v24
v_lshl_add_u32 v23, v18, 3, v21
v_lshlrev_b32 v23, 8, v23
v_lshl_add_u32 v23, v21, 6, v23
v_lshl_add_u32 v23, v20, 5, v23
v_and_b32 v24, 1, v22
v_lshl_add_u32 v23, v24, 4, v23
v_lshrrev_b32 v24, 1, v22
v_lshl_add_u32 v{VWB}, v24, 3, v23
s_mov_b32 s15, {f32(SC)}
s_mul_i32 s14, s6, {2 * 393216}
s_add_u32 s12, s7, s9
s_mul_i32 s12, s12, 12288
s_add_u32 s14, s14, s12         ; O soffset
s_mul_i32 s10, s9, {(16 % NR) * K16}
v_mov_b32 v{VM}, {f32(-1e30)}
v_mov_b32 v{VL}, 0
""")
for Tt in range(4):
    p(f"v_xor_b32 v{Tt}, {Tt << 6}, v{VWB}")
    p(f"v_add_u32 v{4+Tt}, 0x20000, v{Tt}")
    p(f"v_add_u32 v{Tt}, 0x10000, v{Tt}")
rstamp(T0, 62)
stamp(T0)
if int(OPT.get('cpf', 0)): p("s_waitcnt vmcnt(0)")

bar = [0]
def barrier():
    p("s_waitcnt lgkmcnt(0)")
    p("s_barrier")
    bar[0] += 1
def xreg(ks):
    return Q0 + 4 * ks if ks < 8 else S0 + 4 * (ks - 8)
def xreads(st):
    for j in range(5):
        if XSTEP[j] == st:
            for ss in range(8):
                tr = (T0, T1)[ss % 2]
                p(f"v_xor_b32 v{tr}, {ss << 5}, v{VXB}")
                p(f"ds_read_b128 {v(xreg(8 * j + ss), 4)}, v{tr} offset:{XA[j] - 49152}")
XV = O0
isB = [False]
def xissue(j):
    p.cur_tag = 'X%d' % j
    for g in range(2):
        p(f"s_add_u32 s12, s4, {XA[j] + g * 4096}")
        p("s_mov_b32 m0, s12")
        p(f"s_lshl_b32 s13, s{97 + j}, 8")
        p(f"s_add_u32 s13, s13, s5")
        p(f"s_add_u32 s13, s13, {16 * g * 1280}")
        for q in range(4):
            p(f"buffer_load_dwordx4 v{XV + q}, s[32:35], s13 offen offset:{q*1024} lds")
    p.cur_tag = None
def goto_step(st, check=True):
    while bar[0] <= st:
        if isB[0]: p.wait_tag(['X%d' % j for j in range(5) if XSTEP[j] == bar[0]])
        barrier()
        if isB[0]:
            for j in range(5):
                if T['X%d' % j]['issue'] == bar[0] - 1: xissue(j)
        if check: xreads(bar[0] - 1)

def stream(items, D=4, DELAY=2):
    N = len(items)
    nxt = 0; cur_tile = None; bar_at = None
    def issue_reads(upto, n_now):
        nonlocal nxt, cur_tile, bar_at
        while nxt < min(upto, N):
            it = items[nxt]
            if it['tile'] != cur_tile:
                if n_now is not None and bar_at is None and nxt > 0:
                    bar_at = n_now + DELAY
                    for t in it.get('prebar', []): p(t)
                elif n_now is None:
                    for t in it.get('prebar', []): p(t)
                if bar_at is not None and n_now is not None and n_now < bar_at and nxt > n_now + 1:
                    return
                if it.get('step') is not None: goto_step(it['step'])
                else: barrier()
                cur_tile = it['tile']; bar_at = None
            A = F0 + 4 * (nxt % D)
            for t in it['rd'](A): p(t)
            nxt += 1
    issue_reads(D, None)
    for n in range(N):
        it = items[n]
        p(it['mf'](F0 + 4 * (n % D)))
        issue_reads(n + D + 1, n)
        for t in it.get('fill', []): p(t)

def qproj(pref):
    items = []
    for t in range(10):
        tl = T['%s%d' % (pref, t)]
        ab, so = (4, tl['addr'] - 131072) if tl['addr'] >= 131072 else (0, tl['addr'] - 65536)
        assert so >= 0
        for k4 in range(4):
            ks = 4 * t + k4
            for Tt in range(4):
                c = '0' if ks == 0 else v(O0 + 16 * Tt, 16)
                items.append(dict(
                    tile=(pref, t), step=tl['step'],
                    mf=lambda A, Tt=Tt, ks=ks, c=c: f"v_mfma_f32_32x32x16_bf16 {v(O0 + 16*Tt, 16)}, {v(A, 4)}, {v(xreg(ks), 4)}, {c}",
                    rd=lambda A, Tt=Tt, k4=k4, ab=ab, so=so: [
                        f"ds_read_b64_tr_b16 {v(A, 2)}, v{ab + Tt} offset:{so + 4096 * k4}",
                        f"ds_read_b64_tr_b16 {v(A + 2, 2)}, v{ab + Tt} offset:{so + 4096 * k4 + 1024}"]))
    stream(items)
    for Tt in range(4):
        for j in range(8):
            p(f"v_cvt_pk_bf16_f32 v{Q0 + 8*Tt + j}, v{O0 + 16*Tt + 2*j}, v{O0 + 16*Tt + 2*j + 1}")

p("""
s_cmp_eq_u32 s9, 0
s_cbranch_scc0 LA_qb
""")
if PRIO: p("s_setprio 2")
for _ in range(NPACE): p("s_barrier")
bar[0] = 0
qproj('W')
assert bar[0] == 10
p("s_branch LA_attn")
p.label("LA_qb")
srd(32, 16, 16 * 96 * 640 * 2)
p(f"""
v_lshrrev_b32 v{XV+4}, 4, v16
v_xor_b32 v{XV+5}, v19, v{XV+4}
v_lshlrev_b32 v{XV+5}, 4, v{XV+5}
v_mul_u32_u24 v{XV+4}, 1280, v{XV+4}
v_add_u32 v{XV}, v{XV+4}, v{XV+5}
v_xor_b32 v{XV+1}, 64, v{XV+5}
v_xor_b32 v{XV+2}, 0x80, v{XV+5}
v_xor_b32 v{XV+3}, 0xc0, v{XV+5}
v_add_u32 v{XV+1}, v{XV+4}, v{XV+1}
v_add_u32 v{XV+2}, v{XV+4}, v{XV+2}
v_add_u32 v{XV+3}, v{XV+4}, v{XV+3}
v_add_u32 v{XV+1}, 4096, v{XV+1}
v_add_u32 v{XV+2}, 8192, v{XV+2}
v_add_u32 v{XV+3}, 12288, v{XV+3}
s_lshl_b32 s4, s8, 13
s_mul_i32 s5, s6, 122880
s_mul_i32 s12, s8, 40960
s_add_u32 s5, s5, s12
""")
xissue(0); p("s_barrier")
for j in range(1, 5):
    if T['X%d' % j]['issue'] == -1: xissue(j)
assert NPACE == 1
isB[0] = True
bar[0] = 0
qproj('U')
goto_step(25)
isB[0] = False
if PRIO: p("s_setprio 2")
p.label("LA_attn")
p("s_mov_b32 s53, 0")
p.label("LA_unit")
stamp(T0)
def ring_adv():
    return ["s_add_u32 s10, s10, 16384", f"s_cmp_eq_u32 s10, {NR * K16}", "s_cselect_b32 s10, 0, s10"]
items = []
for n in range(8):
    j, a = n // 2, n % 2
    for ss in range(8):
        c = '0' if ss == 0 else v(S0 + 16 * n, 16)
        fill = []
        if n > 0 and ss >= 4:
            b = S0 + 16 * (n - 1) + 4 * (ss - 4)
            for e, tr in enumerate((T0, T1)):
                if n == 1 and ss == 4:
                    fill.append(f"v_max_f32 v{tr}, v{b + 2*e}, v{b + 2*e + 1}")
                else:
                    fill.append(f"v_max3_f32 v{tr}, v{tr}, v{b + 2*e}, v{b + 2*e + 1}")
        pre = [f"v_add_u32 v0, s10, v{VKB}"] + [f"v_xor_b32 v{x}, {x << 5}, v0" for x in range(1, 8)] + ring_adv()
        items.append(dict(
            tile=('K', j), fill=fill, prebar=pre,
            mf=lambda A, n=n, ss=ss, c=c: f"v_mfma_f32_32x32x16_bf16 {v(S0 + 16*n, 16)}, {v(A, 4)}, {v(Q0 + 4*ss, 4)}, {c}",
            rd=lambda A, a=a, ss=ss: [f"ds_read_b128 {v(A, 4)}, v{ss} offset:{8192 * a}"]))
stream(items)
for q4 in range(4):
    b = S0 + 16 * 7 + 4 * q4
    for e, tr in enumerate((T0, T1)):
        p(f"v_max3_f32 v{tr}, v{tr}, v{b + 2*e}, v{b + 2*e + 1}")
MC, AL = 4, 5
stamp(6)
p(f"""
v_max_f32 v{T0}, v{T0}, v{T1}
v_mov_b32 v{T1}, v{T0}
v_permlane32_swap_b32 v{T0}, v{T1}
v_max3_f32 v{T0}, v{T0}, v{T1}, v{VM}
v_sub_f32 v{AL}, v{VM}, v{T0}
v_mul_f32 v{AL}, s15, v{AL}
v_exp_f32 v{AL}, v{AL}
v_mov_b32 v{VM}, v{T0}
v_mul_f32 v{MC}, s15, v{T0}
v_mul_f32 v{VL}, v{VL}, v{AL}
""")
def pops(f):
    r = S0 + 8 * f
    F = lambda i: f"v_fma_f32 v{r+i}, v{r+i}, s15, -v{MC}"
    E = lambda i: f"v_exp_f32 v{r+i}, v{r+i}"
    A = lambda i: f"v_add_f32 v{VL}, v{VL}, v{r+i}"
    C = lambda i: f"v_cvt_pk_bf16_f32 v{r+i}, v{r+2*i}, v{r+2*i+1}"
    return [F(0), F(1), E(0), E(1), F(2), F(3), E(2), E(3), A(0), A(1), C(0), F(4), F(5), E(4), E(5), A(2), A(3), C(1),
            F(6), F(7), E(6), E(7), A(4), A(5), C(2), A(6), A(7), C(3)]
for i in range(64):
    p(f"v_mul_f32 v{O0+i}, v{O0+i}, v{AL}")
for t in pops(0): p(t)
stamp(6)
items = []
for f in range(16):
    j, k4 = f // 4, f % 4
    nx = pops(f + 1) if f < 15 else []
    for Tt in range(4):
        pre = [f"v_add_u32 v0, s10, v{VVB}"] + [f"v_xor_b32 v{x}, {x << 6}, v0" for x in range(1, 4)] + ring_adv()
        items.append(dict(
            tile=('V', j), fill=nx[7 * Tt:7 * Tt + 7], prebar=pre,
            mf=lambda A, Tt=Tt, f=f: f"v_mfma_f32_32x32x16_bf16 {v(O0 + 16*Tt, 16)}, {v(A, 4)}, {v(S0 + 8*f, 4)}, {v(O0 + 16*Tt, 16)}",
            rd=lambda A, Tt=Tt, k4=k4: [
                f"ds_read_b64_tr_b16 {v(A, 2)}, v{Tt} offset:{4096 * k4}",
                f"ds_read_b64_tr_b16 {v(A + 2, 2)}, v{Tt} offset:{4096 * k4 + 2048}"]))
stream(items)
p("""
s_add_u32 s53, s53, 1
s_cmp_lt_u32 s53, 2
s_cbranch_scc1 LA_unit
""")
barrier()
stamp(T0)
p(f"""
v_mov_b32 v{T1}, v{VL}
v_permlane32_swap_b32 v{VL}, v{T1}
v_add_f32 v{VL}, v{VL}, v{T1}
v_rcp_f32 v{VL}, v{VL}
v_mbcnt_lo_u32_b32 v0, -1, 0
v_mbcnt_hi_u32_b32 v0, -1, v0
v_bfe_u32 v1, v0, 4, 1
s_lshl_b32 s12, s8, 1
v_add_u32 v1, s12, v1           ; m16l
v_cmp_lt_u32 vcc, 2, v1
v_mov_b32 v2, {393216 - 3072}
v_cndmask_b32 v2, 0, v2, vcc
v_lshl_add_u32 v2, v1, 10, v2
v_lshrrev_b32 v3, 5, v0
v_lshl_add_u32 v2, v3, 9, v2
v_and_b32 v3, 15, v0
v_lshl_add_u32 v2, v3, 4, v2
""")
for f in range(8):
    r = O0 + 8 * f
    for i in range(8): p(f"v_mul_f32 v{r+i}, v{r+i}, v{VL}")
    for i in range(4): p(f"v_cvt_pk_bf16_f32 v{r+i}, v{r+2*i}, v{r+2*i+1}")
    if f % 2 == 0: p(f"s_add_u32 s12, s14, {(f // 2) * 3072}")
    p(f"buffer_store_dwordx4 {v(r, 4)}, v2, s[48:51], s12 offen offset:{(f % 2) * 256}")
stamp(T0)
rstamp(T0, 63)
p.label("LA_end")
p("s_endpgm")

kernel_head(KB)
p("""
s_cmp_ge_u32 s2, 256
s_cbranch_scc1 LB_end
s_load_dwordx16 s[16:31], s[0:1], 0
v_lshrrev_b32 v1, 6, v0
v_and_b32 v0, 63, v0
v_readfirstlane_b32 s3, v1
s_and_b32 s4, s2, 7
s_lshr_b32 s5, s2, 3
s_and_b32 s6, s5, 3
s_lshl_b32 s4, s4, 2
s_add_u32 s6, s6, s4            ; m48
s_lshr_b32 s7, s5, 2            ; nt
s_waitcnt lgkmcnt(0)
""")
srd(36, 26, 16 * 96 * 640 * 2)
srd(48, 30, WS_BYTES)
NB = int(OPT.get('nb', 5))
ACC, LB = 0, 64
X0, LO, LO2 = 60, 61, 62
p(f"""
v_mov_b32 v{X0}, v0
v_lshlrev_b32 v{LO}, 4, v0
v_add_u32 v{LO2}, 4096, v{LO}
s_mul_i32 s8, s6, 393216
s_mul_i32 s9, s3, 49152
s_add_u32 s8, s8, s9            ; O base
s_lshl_b32 s9, s7, 7
s_lshl_b32 s10, s3, 4
s_add_u32 s9, s9, s10
s_mul_i32 s9, s9, 5120
s_add_u32 s9, s9, {WFR}         ; W base
""")
def ld(t):
    b = LB + 32 * (t % NB)
    p(f"s_add_u32 s12, s8, {t * 3072}")
    p(f"s_add_u32 s13, s9, {t * 5120}")
    for a in range(3):
        p(f"buffer_load_dwordx4 {v(b + 4 * a, 4)}, v{LO}, s[48:51], s12 offen offset:{a * 1024}")
    for j in range(5):
        p(f"buffer_load_dwordx4 {v(b + 12 + 4 * j, 4)}, v{LO if j < 4 else LO2}, s[48:51], s13 offen offset:{(j % 4) * 1024}")
for t in range(NB): ld(t)
for t in range(16):
    b = LB + 32 * (t % NB)
    for j in range(5):
        for a in range(3):
            acc = ACC + 4 * (5 * a + j)
            p(f"v_mfma_f32_16x16x32_bf16 {v(acc, 4)}, {v(b + 12 + 4 * j, 4)}, {v(b + 4 * a, 4)}, {'0' if t == 0 else v(acc, 4)}")
    if t + NB < 16: ld(t + NB)
p(f"""
s_mul_i32 s8, s3, 15360
v_add_u32 v64, s8, v{LO}
""")
for t in range(15):
    p(f"ds_write_b128 v64, {v(ACC + 4 * t, 4)} offset:{t * 1024}")
p(f"""
s_lshr_b32 s9, s3, 1            ; a
s_and_b32 s10, s3, 1            ; u
s_mul_i32 s11, s9, 5
s_lshl_b32 s12, s10, 1
s_add_u32 s11, s11, s12
s_add_u32 s12, s11, 1
s_cmp_eq_u32 s3, 6
s_cselect_b32 s11, 4, s11
s_cselect_b32 s12, 9, s12
s_cmp_eq_u32 s3, 7
s_cselect_b32 s11, 14, s11
s_cselect_b32 s12, 14, s12
s_lshl_b32 s11, s11, 10
s_lshl_b32 s12, s12, 10
v_add_u32 v65, s11, v{LO}
v_add_u32 v66, s12, v{LO}
v_add_u32 v67, {4 * 15360}, v65
v_add_u32 v68, {4 * 15360}, v66
s_waitcnt lgkmcnt(0)
s_barrier
""")
for src in range(8):
    for i in range(2):
        wa = (65 if src < 4 else 67) + i
        p(f"ds_read_b128 {v(72 + 8 * src + 4 * i, 4)}, v{wa} offset:{(src % 4) * 15360}")
p(f"""
s_mul_i32 s14, s6, {48 * 1280}
s_mul_i32 s15, s7, 160
s_add_u32 s14, s14, s15         ; tile base
v_and_b32 v1, 15, v{X0}
v_mul_u32_u24 v1, 1280, v1
v_lshrrev_b32 v2, 4, v{X0}
""")
for step in (1, 2, 4):
    for src in range(0, 8, 2 * step):
        for e in range(8):
            p(f"v_add_f32 v{72 + 8*src + e}, v{72 + 8*src + e}, v{72 + 8*(src+step) + e}")
for i in range(4):
    p(f"v_cvt_pk_bf16_f32 v{72+i}, v{72+2*i}, v{72+2*i+1}")
p(f"""
s_cmp_ge_u32 s3, 6
s_cbranch_scc1 LB_tail
s_mul_i32 s15, s9, {16 * 1280}
s_add_u32 s14, s14, s15
s_lshl_b32 s15, s10, 6
s_add_u32 s14, s14, s15
v_lshl_add_u32 v1, v2, 4, v1
buffer_store_dwordx4 v[72:75], v1, s[36:39], s14 offen
s_endpgm
""")
p.label("LB_tail")
p(f"""
s_mul_i32 s15, s10, {32 * 1280}
s_add_u32 s14, s14, s15         ; wave 7: a=2
s_sub_u32 s15, 1, s10
s_mul_i32 s15, s15, {16 * 1280}
s_add_u32 s15, s15, s14         ; second tile row base
v_lshl_add_u32 v1, v2, 3, v1
buffer_store_dwordx2 v[72:73], v1, s[36:39], s14 offen offset:128
buffer_store_dwordx2 v[74:75], v1, s[36:39], s15 offen offset:128
""")
p.label("LB_end")
p("s_endpgm")

def kd(name, vg, sg):
    return f""".p2align 6
.amdhsa_kernel {name}
  .amdhsa_next_free_vgpr {vg}
  .amdhsa_next_free_sgpr {sg}
  .amdhsa_accum_offset {vg}
  .amdhsa_group_segment_fixed_size 0
  .amdhsa_kernarg_size 64
  .amdhsa_user_sgpr_count 2
  .amdhsa_user_sgpr_kernarg_segment_ptr 1
  .amdhsa_system_sgpr_workgroup_id_x 1
.end_amdhsa_kernel
"""
launch = f"; @launch kernel={KA} grid=(256,1,1) block=(512,1,1) lds=163840\n"
if not ONLYA:
    launch += f"; @launch kernel={KB} grid=(256,1,1) block=(512,1,1) lds=122880\n"
src = HDR + launch + '.amdgcn_target "amdgcn-amd-amdhsa--gfx950"\n.text\n' + p.text() + '.section .rodata,"a"\n' + kd(KA, 256, 102) + kd(KB, 64 + 32 * NB, 64)
open(sys.argv[1], 'w').write(src)
print("nops inserted:", p.nops_inserted, "lines:", len(p.out))
```

```python
import sys, struct
from asmgen import *

OPT = dict(a.split('=') for a in sys.argv[2:]) if len(sys.argv) > 2 else {}
KPOL = OPT.get('kpol', 'nt').replace('+', ' ').replace('none', '')
VPOL = OPT.get('vpol', 'nt').replace('+', ' ').replace('none', '')
ONLYA = int(OPT.get('onlya', 0))
STAMP = int(OPT.get('stamp', 0))
PRIO = int(OPT.get('prio', 2))
ROT = int(OPT.get('rot', 1))
KVD = int(OPT.get('kvd', 3))
WD = int(OPT.get('wd', 2))
KVSTART = int(OPT.get('kvstart', 8))
XB = [int(x) for x in OPT.get('xb', '0,1,3,4,6').split(',')]
SLEEP = int(OPT.get('sleep', 1))

KA = "standalone__mha_block_cached__near_ridge_kernel"
KB = "mha_oproj_kernel"
HDR = open('standalone__mha_block_cached__near_ridge.s.ref').read().split('; Override')[0]
SC = 128 ** -0.5 * 1.4426950408889634
def f32(x): return '0x%08x' % struct.unpack('<I', struct.pack('<f', x))[0]

WFR = 0x1000000
FLG = 0x1800000
WS_BYTES = FLG + 8192
NBG = OPT.get('nbg', '7,0,1,2')
SPOL = OPT.get('spol', 'sc1').replace('+', ' ')
LPOL = OPT.get('lpol', '').replace('+', ' ')
GSLEEP = int(OPT.get('gsleep', 8))
SPINCAP = 1 << 22
K16 = 16384
NR = 6
RS = [K16 * i for i in range(NR)]
GS = [K16 * (NR + i) for i in range(3)]
CTL = 147456
WOST = CTL + 256
XA = [49152, 73728]
WSL = [GS[0], GS[1], GS[2], RS[0], RS[1], RS[2], GS[0], GS[1], GS[2], GS[0]] + [GS[(t + 1) % 3] for t in range(10)]
WPRED = {}
for t in range(20):
    pr = [m for m in range(t) if WSL[m] == WSL[t]]
    WPRED[t] = pr[-1] if pr else None
USTART = int(OPT.get('ustart', 1))
F_GO = CTL + 8
F_OK, F_RDY, F_WOK = CTL + 92, CTL + 108, CTL + 124
PF = int(OPT.get('pf', 1))
F_KV, F_W, F_AKV, F_BKV, F_AW, F_BW, F_XL, F_AX, F_BX = [CTL + 4 * i for i in (0, 1, 4, 8, 12, 16, 20, 24, 28)]

p = Prog()
cold = []
def kernel_head(name):
    p.raw(".globl %s\n.p2align 8\n.type %s,@function\n%s:" % (name, name, name))
    p.reset_state()
def srd(d, lo, nbytes):
    p(f"""
    s_mov_b32 s{d}, s{lo}
    s_and_b32 s{d+1}, s{lo+1}, 0xffff
    s_mov_b32 s{d+2}, {nbytes}
    s_mov_b32 s{d+3}, 0x20000
    """)
def stamp(vr, lvl=1):
    if not STAMP: return
    if (STAMP == 4) != (lvl == 4) and lvl != 0: return
    p(f"""
    s_memtime s[56:57]
    s_waitcnt lgkmcnt(0)
    v_mov_b32 v{vr}, s56
    buffer_store_dword v{vr}, off, s[60:63], s58
    s_add_u32 s58, s58, 4
    """)
def rstamp(vr, slot):
    if not STAMP: return
    p(f"""
    s_memrealtime s[56:57]
    s_waitcnt lgkmcnt(0)
    v_mov_b32 v{vr}, s56
    s_andn2_b32 s57, s58, 0xff
    buffer_store_dword v{vr}, off, s[60:63], s57 offset:{slot * 4}
    """)
def stamp_init():
    if not STAMP: return
    srd(60, 30, 0x3000000)
    p("""
    s_lshl_b32 s58, s2, 3
    s_add_u32 s58, s58, s3
    s_lshl_b32 s58, s58, 8
    s_add_u32 s58, s58, 0x2000000
    """)
nst = [0]
def sst():
    if not STAMP or STAMP == 4 or nst[0] >= 20: return
    p(f"""
    s_memtime s[56:57]
    s_waitcnt lgkmcnt(0)
    s_mov_b32 s{64 + nst[0]}, s56
    """)
    nst[0] += 1
def sst_flush():
    if not STAMP: return
    for i in range(nst[0]):
        p(f"v_mov_b32 v9, s{64 + i}")
        p(f"buffer_store_dword v9, off, s[60:63], s58 offset:{4 * i}")
    nst[0] = 0

uid = [0]
def poll3(vaddr, off, need, vt, st):
    uid[0] += 1
    L = f"LP{uid[0]}"
    vm_saved = p.vm
    p.vm = []
    p.label(L)
    p(f"""
    ds_read_b96 {v(vt, 3)}, v{vaddr} offset:{off}
    v_min3_u32 v{vt}, v{vt}, v{vt+1}, v{vt+2}
    v_readfirstlane_b32 s{st}, v{vt}
    s_cmp_ge_u32 s{st}, {need}
    s_cbranch_scc1 {L}_ok
    s_sleep {SLEEP}
    s_branch {L}
    """)
    p.label(L + "_ok")
    p.vm = vm_saved
def poll1(vaddr, off, need, vt, st):
    uid[0] += 1
    L = f"LP{uid[0]}"
    vm_saved = p.vm
    p.vm = []
    p.label(L)
    p(f"""
    ds_read_b32 v{vt}, v{vaddr} offset:{off}
    v_readfirstlane_b32 s{st}, v{vt}
    s_cmp_ge_u32 s{st}, {need}
    s_cbranch_scc1 {L}_ok
    s_sleep {SLEEP}
    s_branch {L}
    """)
    p.label(L + "_ok")
    p.vm = vm_saved

kernel_head(KA)
p(f"""
s_cmp_ge_u32 s2, 256
s_cbranch_scc1 LA_end
s_load_dwordx16 s[16:31], s[0:1], 0
v_lshrrev_b32 v1, 6, v0
v_and_b32 v0, 63, v0
v_readfirstlane_b32 s3, v1
v_lshlrev_b32 v2, 2, v0
v_add_u32 v2, {CTL}, v2
v_mov_b32 v3, 0
ds_write_b32 v2, v3
s_and_b32 s4, s2, 7
s_lshr_b32 s5, s2, 3
s_and_b32 s6, s4, 1
s_lshl_b32 s6, s6, 3
s_and_b32 s7, s5, 7
s_add_u32 s6, s6, s7            ; b
s_lshr_b32 s7, s4, 1
s_lshl_b32 s7, s7, 2
s_lshr_b32 s8, s5, 3
s_add_u32 s7, s7, s8
s_add_u32 s12, s7, s6           ; b + pair
s_lshl_b32 s7, s7, 1            ; h0
s_and_b32 s8, s3, 3             ; i
s_lshr_b32 s9, s3, 2
s_mul_i32 s12, s12, {ROT}
s_mul_i32 s13, s12, 52
s_lshr_b32 s13, s13, 8
s_mul_i32 s13, s13, 5
s_sub_u32 s97, s12, s13         ; rot
""")
for j in range(1, 5):
    p(f"""
    s_add_u32 s{97+j}, s{96+j}, 1
    s_cmp_eq_u32 s{97+j}, 5
    s_cselect_b32 s{97+j}, 0, s{97+j}
    """)
CPF = int(OPT.get('cpf', 0))
if CPF:
    p("""
    s_getpc_b64 s[12:13]
    v_lshlrev_b32 v2, 4, v0
    v_lshl_add_u32 v2, v1, 12, v2
    """)
    for q in range(4):
        p.raw(f"    global_load_dwordx4 v[{240+4*q}:{243+4*q}], v2, s[12:13] offset:{q*1024}")
p("s_waitcnt lgkmcnt(0)")
srd(48, 30, WS_BYTES)
srd(84, 26, 16 * 96 * 640 * 2)
srd(88, 28, 256)
p("""
s_lshr_b32 s92, s4, 1
s_lshl_b32 s92, s92, 3
s_and_b32 s12, s5, 7
s_add_u32 s92, s92, s12         ; m48
s_and_b32 s93, s4, 1
s_lshl_b32 s93, s93, 2
s_lshr_b32 s12, s5, 3
s_add_u32 s93, s93, s12         ; nt80
""")
stamp_init()
stamp(3, 4)
p("""
s_cmp_lt_u32 s8, 3
s_cbranch_scc1 LA_comp
v_lshrrev_b32 v1, 4, v0         ; rr
v_and_b32 v2, 15, v0
v_mov_b32 v30, 0
s_cmp_eq_u32 s9, 0
s_cbranch_scc1 LA_kv
""")
srd(44, 22, 640 * 4096 * 2)
p(f"""
s_lshl_b32 s14, s7, 8
v_lshlrev_b32 v3, 2, v1
v_xor_b32 v2, v2, v3
v_lshlrev_b32 v2, 4, v2
v_lshl_add_u32 v9, v1, 13, v2
v_add_u32 v10, 31744, v9
v_add_u32 v11, 63488, v9
v_add_u32 v12, 95232, v9
""")
def issueW(t):
    h, idx = t // 10, t % 10
    p.cur_tag = 'W%d' % t
    p(f"s_lshl_b32 s15, s{97 + idx // 2}, 20")
    p(f"s_add_u32 s15, s15, s14")
    for g in range(4):
        p(f"s_mov_b32 m0, {WSL[t] + g * 4096}")
        p(f"s_add_u32 s13, s15, {h * 256 + (64 * (idx % 2) + 16 * g) * 8192}")
        for q in range(4):
            p(f"buffer_load_dwordx4 v{9+q}, s[44:47], s13 offen offset:{q*1024} lds")
    p.cur_tag = None
def publish(flag, val):
    p(f"v_mov_b32 v31, {val}")
    p(f"ds_write_b32 v29, v31 offset:{flag - CTL}")
p(f"s_setprio {int(OPT.get('l1prio', 3))}")
sst()
issueW(0)
p(f"v_mov_b32 v29, {CTL}")
p("s_barrier")
pub = [0]
def land_upto(l):
    while pub[0] <= l:
        p.wait_tag(['W%d' % pub[0]]); publish(F_W, pub[0] + 1); sst(); pub[0] += 1
for t in range(1, 20):
    if t == 10:
        land_upto(9)
        if USTART: poll1(29, F_KV - CTL, USTART, 4, 12)
    m = WPRED[t]
    if m is not None:
        land_upto(min(m + 2, t - 1) if t < 10 else m)
        poll3(29, (F_AW if m < 10 else F_BW) - CTL, m + 1, 4, 12)
    issueW(t)
    if t == KVSTART: publish(F_GO, 1)
    land_upto(t - (WD if t < 10 else 2))
land_upto(19)
sst_flush()
p("s_branch LA_gemm")

p.label("LA_kv")
srd(36, 18, 67108864)
srd(40, 20, 67108864)
p(f"""
s_lshl_b32 s11, s6, 5
s_add_u32 s11, s11, s7
s_lshl_b32 s11, s11, 17
v_xor_b32 v3, v2, v1
v_lshlrev_b32 v3, 4, v3
v_lshl_add_u32 v4, v1, 8, v3
v_xor_b32 v5, 64, v4
v_xor_b32 v6, 0x80, v4
v_xor_b32 v7, 0xc0, v4
v_lshlrev_b32 v3, 2, v1
v_xor_b32 v2, v2, v3
v_lshlrev_b32 v2, 4, v2
v_lshl_add_u32 v8, v1, 8, v2
v_mov_b32 v29, {CTL}
s_barrier
s_cmp_eq_u32 s2, 0
s_cbranch_scc0 LA_nononce
s_memrealtime s[12:13]
s_waitcnt lgkmcnt(0)
s_or_b32 s12, s12, 1
v_mov_b32 v12, s12
s_mov_b64 exec, 1
buffer_store_dword v12, off, s[88:91], 0 sc1
s_mov_b64 exec, -1
""")
p.label("LA_nononce")
p("""
""")
def issueT(n):
    kind = 'K' if n % 8 < 4 else 'V'; h = n // 16; idx = 4 * ((n // 8) % 2) + n % 4
    p.cur_tag = 'T%d' % n
    for g in range(4):
        p(f"s_mov_b32 m0, {RS[n % NR] + g * 4096}")
        p(f"s_add_u32 s13, s11, {h * 131072 + idx * 16384 + g * 4096}")
        for q in range(4):
            vr, sd, pol = (4 + q, 36, KPOL) if kind == 'K' else (8, 40, VPOL)
            p(f"buffer_load_dwordx4 v{vr}, s[{sd}:{sd+3}], s13 offen offset:{q*1024} {pol} lds")
    p.cur_tag = None
if KVSTART: poll1(29, F_GO - CTL, 1, 12, 12)
p("s_mov_b32 s53, 0")
p.label("LA_tagwait")
p(f"""
buffer_load_dword v12, off, s[88:91], 0 sc1
s_add_u32 s53, s53, 1
v_readfirstlane_b32 s12, v12
s_cmp_ge_u32 s53, {SPINCAP}
s_cbranch_scc1 LA_taggo
s_cmp_lg_u32 s12, 0
s_cbranch_scc1 LA_taggo
s_sleep {GSLEEP}
s_branch LA_tagwait
""")
p.label("LA_taggo")
p(f"ds_write_b32 v29, v12 offset:{F_OK - CTL}")
for n in range(32 + KVD - 1):
    if n < 32:
        if n < 3:
            poll3(29, F_AW - CTL, 4 + n, 12, 12)
        if n == 3:
            poll3(29, F_AX - CTL, 5, 12, 12); poll3(29, F_BX - CTL, 5, 12, 12)
        if n >= NR:
            m = n - NR
            poll3(29, (F_AKV if m < 16 else F_BKV) - CTL, m + 1, 12, 12)
        issueT(n)
    l = n - (KVD - 1)
    if l >= 0:
        p.wait_tag(['T%d' % l]); publish(F_KV, l + 1)
        if l % 2: sst()
sst_flush()
p("s_branch LA_gemm")

S0, O0, Q0, F0 = 128, 64, 32, 16
VKB, VVB, VCT, VXB, VM, VL, T0, T1 = 8, 9, 10, 11, 12, 13, 14, 15
SEEN, NEED = 54, 55
p.label("LA_comp")
p(f"""
v_mov_b32 v16, v0               ; lane
v_and_b32 v17, 31, v16          ; q / key
v_lshrrev_b32 v18, 5, v16       ; hi
v_and_b32 v19, 15, v16          ; t' = 4r+c
v_bfe_u32 v20, v16, 4, 1        ; dhalf
v_lshrrev_b32 v21, 2, v19       ; r
v_and_b32 v22, 3, v19           ; c
v_xor_b32 v23, v18, v19
v_lshlrev_b32 v23, 4, v23
v_lshl_add_u32 v{VKB}, v17, 8, v23
s_lshl_b32 s4, s8, 13
s_add_u32 s12, s4, {XA[0]}
v_add_u32 v{VXB}, s12, v{VKB}
v_lshl_add_u32 v23, v18, 2, v21
v_lshlrev_b32 v23, 8, v23
v_lshl_add_u32 v23, v21, 6, v23
v_lshl_add_u32 v24, v20, 5, v23
v_lshl_add_u32 v{VVB}, v22, 3, v24
v_lshl_add_u32 v23, v18, 3, v21
v_lshlrev_b32 v23, 8, v23
v_lshl_add_u32 v23, v21, 6, v23
v_lshl_add_u32 v23, v20, 5, v23
v_and_b32 v24, 1, v22
v_lshl_add_u32 v23, v24, 4, v23
v_lshrrev_b32 v24, 1, v22
v_lshl_add_u32 v23, v24, 3, v23
v_add_u32 v0, {GS[0]}, v23
v_xor_b32 v1, 64, v0
v_xor_b32 v2, 0x80, v0
v_xor_b32 v3, 0xc0, v0
s_mov_b32 s15, {f32(SC)}
s_mul_i32 s14, s6, {2 * 393216}
s_add_u32 s12, s7, s9
s_mul_i32 s12, s12, 12288
s_add_u32 s14, s14, s12         ; O soffset
s_mul_i32 s10, s9, {(16 % NR) * K16}
v_mov_b32 v{VM}, {f32(-1e30)}
v_mov_b32 v{VL}, 0
v_mov_b32 v{VCT}, {CTL}
s_lshl_b32 s12, s8, 2
s_lshl_b32 s13, s9, 4
s_add_u32 s13, s13, s12
v_add_u32 v4, s12, v{VCT}       ; CTL + 4i
v_add_u32 v5, s13, v{VCT}
""")
rstamp(T0, 62)
stamp(T0)

def check(flag_off, vaddr, need, vt):
    uid[0] += 1
    L = f"LC{uid[0]}"
    p(f"v_readfirstlane_b32 s{SEEN}, v{vt}")
    p(f"s_cmp_ge_u32 s{SEEN}, {need}")
    p._put(f"s_cbranch_scc0 {L}")
    p.raw(f"{L}_ret:")
    cold.append(f"""{L}:
    s_sleep {SLEEP}
    ds_read_b32 v{vt}, v{vaddr} offset:{flag_off}
    s_waitcnt lgkmcnt(0)
    v_readfirstlane_b32 s{SEEN}, v{vt}
    s_nop 3
    s_cmp_ge_u32 s{SEEN}, {need}
    s_cbranch_scc0 {L}
    s_branch {L}_ret""")

def xreg(ks):
    return Q0 + 4 * ks if ks < 8 else S0 + 4 * (ks - 8)
def xreads(j):
    for ss in range(8):
        tr = (T0, T1)[ss % 2]
        p(f"v_xor_b32 v{tr}, {ss << 5}, v{VXB}")
        p(f"ds_read_b128 {v(xreg(8 * j + ss), 4)}, v{tr} offset:{XA[j % 2] - XA[0]}")

CK = 6
def stream(items, flag, D=4):
    N = len(items)
    nxt = 0; cur_tile = None
    def early(k):
        p(f"ds_read_b32 v{items[k]['ck']}, v{VCT} offset:{flag - CTL}")
    def issue_reads(upto):
        nonlocal nxt, cur_tile
        while nxt < min(upto, N):
            it = items[nxt]
            if it['tile'] != cur_tile:
                it['enter']()
                cur_tile = it['tile']
            A = F0 + 4 * (nxt % D)
            for t in it['rd'](A): p(t)
            if nxt + 5 < N and items[nxt + 5]['tile'] != items[nxt + 4]['tile']: early(nxt + 5)
            nxt += 1
            if nxt == N or items[nxt]['tile'] != cur_tile: it['leave']()
    early(0)
    issue_reads(D)
    for n in range(N):
        it = items[n]
        p(it['mf'](F0 + 4 * (n % D)))
        issue_reads(n + D + 1)
        for t in it.get('fill', []): p(t)

def qproj(grp):
    items = []
    for t in range(10):
        g = 10 * grp + t
        lowr = WSL[g] < GS[0]
        so = WSL[g] - (0 if lowr else GS[0])
        prev_low = (g % 10 > 0) and WSL[g - 1] < GS[0]
        def enter(t=t, g=g, lowr=lowr, prev_low=prev_low):
            if lowr != prev_low:
                for x in range(4):
                    p(f"v_subrev_u32 v{x}, {GS[0]}, v{x}" if lowr else f"v_add_u32 v{x}, {GS[0]}, v{x}")
            check(F_W - CTL, VCT, g + 1, CK)
            if STAMP == 3 and grp == 0: stamp(7)
            if grp == 0:
                for j in range(5):
                    if XB[j] == t:
                        p(f"ds_read_b32 v{CK}, v4 offset:{F_XL - CTL}")
                        check(F_XL - CTL, 4, j + 1, CK)
                        if STAMP == 3: stamp(7)
                        xreads(j)
                        p(f"v_mov_b32 v7, {j + 1}")
                        p(f"ds_write_b32 v4, v7 offset:{F_AX - CTL}")
        def leave(g=g):
            p(f"v_mov_b32 v7, {g + 1}")
            p(f"ds_write_b32 v5, v7 offset:{F_AW - CTL}")
        for k4 in range(4):
            ks = 4 * t + k4
            for Tt in range(4):
                c = '0' if ks == 0 else v(O0 + 16 * Tt, 16)
                items.append(dict(
                    tile=t, enter=enter, leave=leave, ck=CK,
                    mf=lambda A, Tt=Tt, ks=ks, c=c: f"v_mfma_f32_32x32x16_bf16 {v(O0 + 16*Tt, 16)}, {v(A, 4)}, {v(xreg(ks), 4)}, {c}",
                    rd=lambda A, Tt=Tt, k4=k4, so=so: [
                        f"ds_read_b64_tr_b16 {v(A, 2)}, v{Tt} offset:{so + 4096 * k4}",
                        f"ds_read_b64_tr_b16 {v(A + 2, 2)}, v{Tt} offset:{so + 4096 * k4 + 1024}"]))
    stream(items, F_W)
    for Tt in range(4):
        for j in range(8):
            p(f"v_cvt_pk_bf16_f32 v{Q0 + 8*Tt + j}, v{O0 + 16*Tt + 2*j}, v{O0 + 16*Tt + 2*j + 1}")

p("""
s_cmp_eq_u32 s9, 0
s_cbranch_scc0 LA_qb
""")
if PRIO: p(f"s_setprio {PRIO}")
p("s_barrier")
if CPF: p("s_waitcnt vmcnt(0)")
qproj(0)
p("s_branch LA_attn")
p.label("LA_qb")
XV = O0
srd(32, 16, 16 * 96 * 640 * 2)
p(f"""
v_lshrrev_b32 v{XV+4}, 4, v16
v_xor_b32 v{XV+5}, v19, v{XV+4}
v_lshlrev_b32 v{XV+5}, 4, v{XV+5}
v_mul_u32_u24 v{XV+4}, 1280, v{XV+4}
v_add_u32 v{XV}, v{XV+4}, v{XV+5}
v_xor_b32 v{XV+1}, 64, v{XV+5}
v_xor_b32 v{XV+2}, 0x80, v{XV+5}
v_xor_b32 v{XV+3}, 0xc0, v{XV+5}
v_add_u32 v{XV+1}, v{XV+4}, v{XV+1}
v_add_u32 v{XV+2}, v{XV+4}, v{XV+2}
v_add_u32 v{XV+3}, v{XV+4}, v{XV+3}
v_add_u32 v{XV+1}, 4096, v{XV+1}
v_add_u32 v{XV+2}, 8192, v{XV+2}
v_add_u32 v{XV+3}, 12288, v{XV+3}
s_mul_i32 s5, s6, 122880
s_mul_i32 s12, s8, 40960
s_add_u32 s5, s5, s12
""")
def xissue(j):
    p.cur_tag = 'X%d' % j
    for g in range(2):
        p(f"s_add_u32 s12, s4, {XA[j % 2] + g * 4096}")
        p("s_mov_b32 m0, s12")
        p(f"s_lshl_b32 s13, s{97 + j}, 8")
        p(f"s_add_u32 s13, s13, s5")
        p(f"s_add_u32 s13, s13, {16 * g * 1280}")
        for q in range(4):
            p(f"buffer_load_dwordx4 v{XV + q}, s[32:35], s13 offen offset:{q*1024} lds")
    p.cur_tag = None
xissue(0); xissue(1)
p("s_barrier")
def xland(j):
    p.wait_tag(['X%d' % j])
    p(f"v_mov_b32 v7, {j + 1}")
    p(f"ds_write_b32 v4, v7 offset:{F_XL - CTL}")
    xreads(j)
    p("s_waitcnt lgkmcnt(0)")
def xnext(j):
    poll1(4, F_AX - CTL, j - 1, CK, SEEN)
    xissue(j)
xland(0); xland(1); xnext(2); xnext(3); xland(2); xland(3); xnext(4); xland(4)
p(f"ds_write_b32 v4, v7 offset:{F_BX - CTL}")
p("""
s_cmp_eq_u32 s8, 0
s_cbranch_scc0 LA_wodone
""")
srd(40, 24, 4096 * 640 * 2)
p(f"""
v_lshlrev_b32 v68, 4, v16
v_mul_u32_u24 v112, 26, v16
v_lshrrev_b32 v112, 8, v112     ; lane/10
v_mul_u32_u24 v112, {1280 - 160}, v112
v_add_u32 v69, v68, v112
v_lshrrev_b32 v113, 4, v16      ; kg
v_and_b32 v112, 1, v113
v_lshlrev_b32 v112, 4, v112
v_lshrrev_b32 v114, 1, v113
v_lshl_add_u32 v112, v114, 2, v112
v_bfe_u32 v114, v16, 2, 2
v_add_u32 v112, v112, v114
v_mul_u32_u24 v112, 160, v112
v_add_u32 v112, {WOST}, v112
v_and_b32 v114, 3, v16
v_lshl_add_u32 v70, v114, 4, v112
v_lshl_add_u32 v71, v114, 3, v112
s_mul_i32 s59, s92, {128 * 1280}
s_mul_i32 s13, s93, 160
s_add_u32 s59, s59, s13         ; src
s_lshl_b32 s12, s93, 7
s_lshl_b32 s13, s92, 2
s_add_u32 s12, s12, s13
s_mul_i32 s5, s12, 5120
s_add_u32 s5, s5, {WFR}         ; dst
""")
def wo_st(r):
    for f in range(10):
        p(f"s_add_u32 s13, s5, {(10 * r + f) * 1024}")
        p(f"buffer_store_dwordx4 {v(72 + 4 * f, 4)}, v68, s[48:51], s13 offen {SPOL}")
for r in range(2):
    p.cur_tag = 'wo'
    p("s_mov_b32 exec_hi, 0xfffffff")
    for i in range(11):
        if i == 10: p("s_mov_b32 exec_hi, 0xff")
        p(f"s_mov_b32 m0, {WOST + 960 * i}")
        p(f"s_add_u32 s13, s59, {(64 * r + 6 * i) * 1280}")
        p(f"buffer_load_dwordx4 v69, s[40:43], s13 offen lds")
    p("s_mov_b64 exec, -1")
    p.cur_tag = None
    if r == 1: wo_st(0)
    p.wait_tag(['wo'])
    for f in range(10):
        tl, j = f // 5, f % 5
        o = 32 * 160 * tl + (64 * (j // 2) + 8 * (j % 2) if j < 4 else 128)
        a_ = 70 if j < 4 else 71
        p(f"ds_read_b64_tr_b16 {v(72 + 4 * f, 2)}, v{a_} offset:{o}")
        p(f"ds_read_b64_tr_b16 {v(74 + 4 * f, 2)}, v{a_} offset:{o + 8 * 160}")
    p("s_waitcnt lgkmcnt(0)")
wo_st(1)
poll1(VCT, F_OK - CTL, 1, 112, 12)
p(f"""
s_lshl_b32 s12, s93, 8
s_lshl_b32 s13, s92, 2
s_add_u32 s12, s12, s13
s_add_u32 s12, s12, {FLG + 4096}
s_waitcnt vmcnt(0)
s_mov_b64 exec, 1
buffer_store_dword v112, off, s[48:51], s12 sc1
s_mov_b64 exec, -1
""")
p.label("LA_wodone")
qproj(1)
if PRIO: p(f"s_setprio {PRIO - 1}")
p.label("LA_attn")
p(f"""
s_mov_b32 s53, 0
s_lshl_b32 s{NEED}, s9, 4
v_mov_b32 v{VXB}, v5
""")
VDN = VXB
p.label("LA_unit")
stamp(T0)
def kv_enter(base, sh, na, ck):
    def f():
        p(f"s_add_u32 s{NEED}, s{NEED}, 1")
        p(f"v_add_u32 v0, s10, v{base}")
        for x in range(1, na): p(f"v_xor_b32 v{x}, {x << sh}, v0")
        p("s_add_u32 s10, s10, 16384")
        p(f"s_cmp_eq_u32 s10, {NR * K16}")
        p("s_cselect_b32 s10, 0, s10")
        check(F_KV - CTL, VCT, f"s{NEED}", ck)
    return f
def kv_leave(tmp):
    def f():
        p(f"v_mov_b32 v{tmp}, s{NEED}")
        p(f"ds_write_b32 v{VDN}, v{tmp} offset:{F_AKV - CTL}")
    return f
items = []
for n in range(8):
    j, a = n // 2, n % 2
    ckr = S0 + 16 * 7 + 15; tmpr = S0 + 16 * 7 + 14 if j < 3 else 0
    for ss in range(8):
        c = '0' if ss == 0 else v(S0 + 16 * n, 16)
        fill = []
        if n > 0 and ss >= 4:
            b = S0 + 16 * (n - 1) + 4 * (ss - 4)
            for e, tr in enumerate((T0, T1)):
                if n == 1 and ss == 4:
                    fill.append(f"v_max_f32 v{tr}, v{b + 2*e}, v{b + 2*e + 1}")
                else:
                    fill.append(f"v_max3_f32 v{tr}, v{tr}, v{b + 2*e}, v{b + 2*e + 1}")
        items.append(dict(
            tile=j, fill=fill, enter=kv_enter(VKB, 5, 8, ckr), leave=kv_leave(tmpr), ck=ckr,
            mf=lambda A, n=n, ss=ss, c=c: f"v_mfma_f32_32x32x16_bf16 {v(S0 + 16*n, 16)}, {v(A, 4)}, {v(Q0 + 4*ss, 4)}, {c}",
            rd=lambda A, a=a, ss=ss: [f"ds_read_b128 {v(A, 4)}, v{ss} offset:{8192 * a}"]))
stream(items, F_KV)
for q4 in range(4):
    b = S0 + 16 * 7 + 4 * q4
    for e, tr in enumerate((T0, T1)):
        p(f"v_max3_f32 v{tr}, v{tr}, v{b + 2*e}, v{b + 2*e + 1}")
MC, AL = 4, 5
stamp(6)
p(f"""
v_max_f32 v{T0}, v{T0}, v{T1}
v_mov_b32 v{T1}, v{T0}
v_permlane32_swap_b32 v{T0}, v{T1}
v_max3_f32 v{T0}, v{T0}, v{T1}, v{VM}
v_sub_f32 v{AL}, v{VM}, v{T0}
v_mul_f32 v{AL}, s15, v{AL}
v_exp_f32 v{AL}, v{AL}
v_mov_b32 v{VM}, v{T0}
v_mul_f32 v{MC}, s15, v{T0}
v_mul_f32 v{VL}, v{VL}, v{AL}
""")
def pops(f):
    r = S0 + 8 * f
    F = lambda i: f"v_fma_f32 v{r+i}, v{r+i}, s15, -v{MC}"
    E = lambda i: f"v_exp_f32 v{r+i}, v{r+i}"
    A = lambda i: f"v_add_f32 v{VL}, v{VL}, v{r+i}"
    C = lambda i: f"v_cvt_pk_bf16_f32 v{r+i}, v{r+2*i}, v{r+2*i+1}"
    return [F(0), F(1), E(0), E(1), F(2), F(3), E(2), E(3), A(0), A(1), C(0), F(4), F(5), E(4), E(5), A(2), A(3), C(1),
            F(6), F(7), E(6), E(7), A(4), A(5), C(2), A(6), A(7), C(3)]
for i in range(64):
    p(f"v_mul_f32 v{O0+i}, v{O0+i}, v{AL}")
for t in pops(0): p(t)
stamp(6)
items = []
for f in range(16):
    j, k4 = f // 4, f % 4
    nx = pops(f + 1) if f < 15 else []
    for Tt in range(4):
        items.append(dict(
            tile=j, fill=nx[7 * Tt:7 * Tt + 7], enter=kv_enter(VVB, 6, 4, 6), leave=kv_leave(7), ck=6,
            mf=lambda A, Tt=Tt, f=f: f"v_mfma_f32_32x32x16_bf16 {v(O0 + 16*Tt, 16)}, {v(A, 4)}, {v(S0 + 8*f, 4)}, {v(O0 + 16*Tt, 16)}",
            rd=lambda A, Tt=Tt, k4=k4: [
                f"ds_read_b64_tr_b16 {v(A, 2)}, v{Tt} offset:{4096 * k4}",
                f"ds_read_b64_tr_b16 {v(A + 2, 2)}, v{Tt} offset:{4096 * k4 + 2048}"]))
stream(items, F_KV)
p("""
s_add_u32 s53, s53, 1
s_cmp_lt_u32 s53, 2
s_cbranch_scc1 LA_unit
""")
stamp(T0)
p(f"""
v_mov_b32 v{T1}, v{VL}
v_permlane32_swap_b32 v{VL}, v{T1}
v_add_f32 v{VL}, v{VL}, v{T1}
v_rcp_f32 v{VL}, v{VL}
v_mbcnt_lo_u32_b32 v0, -1, 0
v_mbcnt_hi_u32_b32 v0, -1, v0
v_bfe_u32 v1, v0, 4, 1
s_lshl_b32 s12, s8, 1
v_add_u32 v1, s12, v1           ; m16l
v_cmp_lt_u32 vcc, 2, v1
v_mov_b32 v2, {393216 - 3072}
v_cndmask_b32 v2, 0, v2, vcc
v_lshl_add_u32 v2, v1, 10, v2
v_lshrrev_b32 v3, 5, v0
v_lshl_add_u32 v2, v3, 9, v2
v_and_b32 v3, 15, v0
v_lshl_add_u32 v2, v3, 4, v2
""")
for f in range(8):
    r = O0 + 8 * f
    for i in range(8): p(f"v_mul_f32 v{r+i}, v{r+i}, v{VL}")
    for i in range(4): p(f"v_cvt_pk_bf16_f32 v{r+i}, v{r+2*i}, v{r+2*i+1}")
    if f % 2 == 0: p(f"s_add_u32 s12, s14, {(f // 2) * 3072}")
    p(f"buffer_store_dwordx4 {v(r, 4)}, v2, s[48:51], s12 offen offset:{(f % 2) * 256} {SPOL}")
stamp(T0)
p(f"""
s_lshl_b32 s12, s9, 4
v_add_u32 v4, s12, v{VCT}
v_mov_b32 v1, 1
s_waitcnt vmcnt(0)
s_mov_b64 exec, 1
ds_add_rtn_u32 v0, v4, v1 offset:28
v_readfirstlane_b32 s12, v0
s_mov_b32 s53, 0
s_cmp_eq_u32 s12, 2
s_waitcnt lgkmcnt(0)
s_cbranch_scc0 LA_pubdone
""")
poll1(VCT, F_OK - CTL, 1, 3, 12)
p(f"""
s_lshl_b32 s12, s6, 8
s_add_u32 s13, s7, s9
s_lshl_b32 s13, s13, 2
s_add_u32 s12, s12, s13
s_add_u32 s12, s12, {FLG}
buffer_store_dword v3, off, s[48:51], s12 sc1
""")
p.label("LA_pubdone")
p("s_mov_b64 exec, -1")
p.label("LA_gemm")
ACC, LB = 0, 72
X0, LO, LO2, FL, SN, CT, TA, TB = 60, 61, 62, 63, 64, 65, 66, 67
p(f"""
s_setprio 0
v_mbcnt_lo_u32_b32 v{X0}, -1, 0
v_mbcnt_hi_u32_b32 v{X0}, -1, v{X0}
v_lshlrev_b32 v{LO}, 4, v{X0}
v_add_u32 v{LO2}, 4096, v{LO}
v_and_b32 v{FL}, 31, v{X0}
v_lshlrev_b32 v{FL}, 2, v{FL}
v_mov_b32 v{CT}, {CTL}
ds_read_b32 v{SN}, v{CT} offset:{F_OK - CTL}
s_lshr_b32 s12, s92, 1
s_lshl_b32 s12, s12, 8
s_lshl_b32 s13, s93, 8
s_add_u32 s13, s13, 4096
v_mov_b32 v{TA}, s12
v_mov_b32 v{TB}, s13
v_cmp_gt_u32 vcc, 32, v{X0}
v_cndmask_b32 v{TA}, v{TB}, v{TA}, vcc
v_add_u32 v{FL}, v{FL}, v{TA}
s_mov_b32 s32, {FLG}
s_mul_i32 s33, s92, 393216      ; O base
s_mul_i32 s34, s93, {128 * 5120}
s_add_u32 s34, s34, {WFR}
s_lshr_b32 s35, s2, 3
s_lshl_b32 s12, s3, 2
s_add_u32 s35, s35, s12
s_and_b32 s35, s35, 31
s_mov_b32 s53, 0
""")
for i in range(60): p(f"v_mov_b32 v{ACC + i}, 0")
stamp(TB, 4)
mask = sum(1 << int(x) for x in NBG.split(',') if x != '')
SLEEP = 4
p(f"""
s_lshr_b32 s12, {mask}, s3
s_and_b32 s12, s12, 1
s_cmp_eq_u32 s12, 1
s_waitcnt lgkmcnt(0)
s_cbranch_scc1 LA_gloop
""")
poll1(CT, F_KV - CTL, 32, TA, 12)
p("s_branch LA_gloop")
p.label("LA_gstarve")
p(f"""
v_mov_b32 v{TA}, 1
s_mov_b64 exec, 1
ds_or_rtn_b32 v{TB}, v{CT}, v{TA} offset:{F_WOK - CTL}
s_mov_b64 exec, -1
v_readfirstlane_b32 s12, v{TB}
s_cmp_eq_u32 s12, 0
s_cbranch_scc1 LA_gpoll
s_sleep 2
s_branch LA_gloop
""")
p.label("LA_gpoll")
p(f"""
buffer_load_dword v{TA}, v{FL}, s[48:51], s32 offen sc1
s_add_u32 s53, s53, 1
v_cmp_eq_u32 vcc, v{TA}, v{SN}
s_and_b32 s12, vcc_lo, vcc_hi
s_cmp_ge_u32 s53, {SPINCAP}
s_cselect_b32 s12, -1, s12
v_mov_b32 v{TA}, s12
v_mov_b32 v{TB}, 0
ds_write_b32 v{CT}, v{TA} offset:{F_RDY - CTL}
s_andn2_b32 s12, s12, s36
s_cbranch_scc1 LA_gunlock
s_sleep {GSLEEP}
""")
p.label("LA_gunlock")
p(f"ds_write_b32 v{CT}, v{TB} offset:{F_WOK - CTL}")
p.label("LA_gloop")
p(f"""
ds_read_b32 v{TA}, v{CT} offset:{F_RDY - CTL}
ds_read_b32 v{TB}, v{CT} offset:12
v_readfirstlane_b32 s38, v{TA}
v_readfirstlane_b32 s36, v{TB}
s_cmp_eq_u32 s36, -1
s_cbranch_scc1 LA_gdone
s_andn2_b32 s38, s38, s36
s_cbranch_scc0 LA_gstarve
s_mov_b32 s39, s38
s_lshr_b64 s[38:39], s[38:39], s35
s_ff1_i32_b32 s37, s38
s_add_u32 s37, s37, s35
s_and_b32 s37, s37, 31          ; head
s_lshl_b32 s38, 1, s37
v_mov_b32 v{TA}, s38
s_mov_b64 exec, 1
ds_or_rtn_b32 v{TB}, v{CT}, v{TA} offset:12
s_mov_b64 exec, -1
v_readfirstlane_b32 s36, v{TB}
s_and_b32 s36, s36, s38
s_cbranch_scc1 LA_gloop
s_mul_i32 s40, s37, 12288
s_add_u32 s40, s40, s33
s_mul_i32 s41, s37, 20480
s_add_u32 s41, s41, s34
""")
stamp(TB, 4)
for t in range(4):
    b = LB + 32 * t
    p(f"s_add_u32 s12, s40, {t * 3072}")
    p(f"s_add_u32 s13, s41, {t * 5120}")
    for a_ in range(3):
        p(f"buffer_load_dwordx4 {v(b + 4 * a_, 4)}, v{LO}, s[48:51], s12 offen offset:{a_ * 1024} {LPOL}")
    for j in range(5):
        p(f"buffer_load_dwordx4 {v(b + 12 + 4 * j, 4)}, v{LO if j < 4 else LO2}, s[48:51], s13 offen offset:{(j % 4) * 1024} {LPOL}")
for t in range(4):
    b = LB + 32 * t
    for j in range(5):
        for a_ in range(3):
            acc = ACC + 4 * (5 * a_ + j)
            p(f"v_mfma_f32_16x16x32_bf16 {v(acc, 4)}, {v(b + 12 + 4 * j, 4)}, {v(b + 4 * a_, 4)}, {v(acc, 4)}")
stamp(TB, 4)
p("s_branch LA_gloop")
p.label("LA_gdone")
stamp(TA, 0)
p(f"""
s_barrier
s_mul_i32 s8, s3, 15360
v_add_u32 v64, s8, v{LO}
""")
for t in range(15):
    p(f"ds_write_b128 v64, {v(ACC + 4 * t, 4)} offset:{t * 1024}")
p(f"""
s_lshr_b32 s9, s3, 1            ; a
s_and_b32 s10, s3, 1            ; u
s_mul_i32 s11, s9, 5
s_lshl_b32 s12, s10, 1
s_add_u32 s11, s11, s12
s_add_u32 s12, s11, 1
s_cmp_eq_u32 s3, 6
s_cselect_b32 s11, 4, s11
s_cselect_b32 s12, 9, s12
s_cmp_eq_u32 s3, 7
s_cselect_b32 s11, 14, s11
s_cselect_b32 s12, 14, s12
s_lshl_b32 s11, s11, 10
s_lshl_b32 s12, s12, 10
v_add_u32 v65, s11, v{LO}
v_add_u32 v66, s12, v{LO}
v_add_u32 v67, {4 * 15360}, v65
v_add_u32 v68, {4 * 15360}, v66
s_waitcnt lgkmcnt(0)
s_barrier
""")
for src_ in range(8):
    for i in range(2):
        wa = (65 if src_ < 4 else 67) + i
        p(f"ds_read_b128 {v(72 + 8 * src_ + 4 * i, 4)}, v{wa} offset:{(src_ % 4) * 15360}")
p(f"""
s_mul_i32 s14, s92, {48 * 1280}
s_mul_i32 s15, s93, 160
s_add_u32 s14, s14, s15
v_and_b32 v1, 15, v{X0}
v_mul_u32_u24 v1, 1280, v1
v_lshrrev_b32 v2, 4, v{X0}
""")
for step in (1, 2, 4):
    for src_ in range(0, 8, 2 * step):
        for e in range(8):
            p(f"v_add_f32 v{72 + 8*src_ + e}, v{72 + 8*src_ + e}, v{72 + 8*(src_+step) + e}")
for i in range(4):
    p(f"v_cvt_pk_bf16_f32 v{72+i}, v{72+2*i}, v{72+2*i+1}")
rstamp(TA, 63)
p(f"""
s_cmp_ge_u32 s3, 6
s_cbranch_scc1 LB_tail
s_mul_i32 s15, s9, {16 * 1280}
s_add_u32 s14, s14, s15
s_lshl_b32 s15, s10, 6
s_add_u32 s14, s14, s15
v_lshl_add_u32 v1, v2, 4, v1
buffer_store_dwordx4 v[72:75], v1, s[84:87], s14 offen
s_endpgm
""")
p.label("LB_tail")
p(f"""
s_mul_i32 s15, s10, {32 * 1280}
s_add_u32 s14, s14, s15
s_sub_u32 s15, 1, s10
s_mul_i32 s15, s15, {16 * 1280}
s_add_u32 s15, s15, s14
v_lshl_add_u32 v1, v2, 3, v1
buffer_store_dwordx2 v[72:73], v1, s[84:87], s14 offen offset:128
buffer_store_dwordx2 v[74:75], v1, s[84:87], s15 offen offset:128
""")
p.label("LA_end")
p("s_endpgm")
for c in cold: p.raw(c)
launch = "; @launch grid=(256,1,1) block=(512,1,1) lds=163840\n"
out = HDR + launch + '.amdgcn_target "amdgcn-amd-amdhsa--gfx950"\n.text\n' + p.text() + f""".section .rodata,"a"
.p2align 6
.amdhsa_kernel {KA}
  .amdhsa_next_free_vgpr 256
  .amdhsa_next_free_sgpr 102
  .amdhsa_accum_offset 256
  .amdhsa_group_segment_fixed_size 0
  .amdhsa_kernarg_size 64
  .amdhsa_user_sgpr_count 2
  .amdhsa_user_sgpr_kernarg_segment_ptr 1
  .amdhsa_system_sgpr_workgroup_id_x 1
.end_amdhsa_kernel
"""
open(sys.argv[1], 'w').write(out)
print("nops inserted:", p.nops_inserted, "lines:", len(p.out))
```

```python
import sys, struct
from asmgen import *

OPT = dict(a.split('=') for a in sys.argv[2:]) if len(sys.argv) > 2 else {}
KPOL = OPT.get('kpol', 'nt').replace('+', ' ').replace('none', '')
VPOL = OPT.get('vpol', 'nt').replace('+', ' ').replace('none', '')
ONLYA = int(OPT.get('onlya', 0))
STAMP = int(OPT.get('stamp', 0))
PRIO = int(OPT.get('prio', 2))
ROT = int(OPT.get('rot', 0))
KVD = int(OPT.get('kvd', 3))
WD = int(OPT.get('wd', 1))
KVSTART = int(OPT.get('kvstart', 9))
XB = [int(x) for x in OPT.get('xb', '0,1,2,4,6').split(',')]
SLEEP = int(OPT.get('sleep', 1))

KA = "standalone__mha_block_cached__near_ridge_kernel"
KB = "mha_oproj_kernel"
HDR = open('standalone__mha_block_cached__near_ridge.s.ref').read().split('; Override')[0]
SC = 128 ** -0.5 * 1.4426950408889634
def f32(x): return '0x%08x' % struct.unpack('<I', struct.pack('<f', x))[0]

WFR = 0x1000000
FLG = 0x1800000
WS_BYTES = FLG + 8192
NBG = OPT.get('nbg', '7,0,1,2')
SPOL = OPT.get('spol', 'sc1').replace('+', ' ')
LPOL = OPT.get('lpol', '').replace('+', ' ')
GSLEEP = int(OPT.get('gsleep', 8))
SPINCAP = 1 << 22
K16 = 16384
NR = 6
RS = [K16 * i for i in range(NR)]
GS = [K16 * (NR + i) for i in range(3)]
CTL = 147456
WOST = CTL + 256
XA = [49152, 73728]
WSL = [GS[0], GS[1], GS[2], RS[0], RS[1], RS[2], GS[0], GS[1], GS[2], RS[0]] + [GS[t % 3] for t in range(10)]
RO = 1
WPRED = {}
for t in range(20):
    pr = [m for m in range(t) if WSL[m] == WSL[t]]
    WPRED[t] = pr[-1] if pr else None
USTART = int(OPT.get('ustart', 1))
F_GO = CTL + 8
F_OK, F_RDY, F_WOK = CTL + 92, CTL + 108, CTL + 124
PF = int(OPT.get('pf', 1))
F_KV, F_W, F_AKV, F_BKV, F_AW, F_BW, F_XL, F_AX, F_BX = [CTL + 4 * i for i in (0, 1, 4, 8, 12, 16, 20, 24, 28)]

p = Prog()
cold = []
def kernel_head(name):
    p.raw(".globl %s\n.p2align 8\n.type %s,@function\n%s:" % (name, name, name))
    p.reset_state()
def srd(d, lo, nbytes):
    p(f"""
    s_mov_b32 s{d}, s{lo}
    s_and_b32 s{d+1}, s{lo+1}, 0xffff
    s_mov_b32 s{d+2}, {nbytes}
    s_mov_b32 s{d+3}, 0x20000
    """)
def stamp(vr, lvl=1):
    if not STAMP: return
    if (STAMP == 4) != (lvl == 4) and lvl != 0: return
    p(f"""
    s_memtime s[56:57]
    s_waitcnt lgkmcnt(0)
    v_mov_b32 v{vr}, s56
    buffer_store_dword v{vr}, off, s[60:63], s58
    s_add_u32 s58, s58, 4
    """)
def rstamp(vr, slot):
    if not STAMP: return
    p(f"""
    s_memrealtime s[56:57]
    s_waitcnt lgkmcnt(0)
    v_mov_b32 v{vr}, s56
    s_andn2_b32 s57, s58, 0xff
    buffer_store_dword v{vr}, off, s[60:63], s57 offset:{slot * 4}
    """)
def stamp_init():
    if not STAMP: return
    srd(60, 30, 0x3000000)
    p("""
    s_lshl_b32 s58, s2, 3
    s_add_u32 s58, s58, s3
    s_lshl_b32 s58, s58, 8
    s_add_u32 s58, s58, 0x2000000
    """)
nst = [0]
def sst():
    if not STAMP or STAMP == 4 or nst[0] >= 20: return
    p(f"""
    s_memtime s[56:57]
    s_waitcnt lgkmcnt(0)
    s_mov_b32 s{64 + nst[0]}, s56
    """)
    nst[0] += 1
def sst_flush():
    if not STAMP: return
    for i in range(nst[0]):
        p(f"v_mov_b32 v9, s{64 + i}")
        p(f"buffer_store_dword v9, off, s[60:63], s58 offset:{4 * i}")
    nst[0] = 0

uid = [0]
def poll3(vaddr, off, need, vt, st):
    uid[0] += 1
    L = f"LP{uid[0]}"
    vm_saved = p.vm
    p.vm = []
    p.label(L)
    p(f"""
    ds_read_b96 {v(vt, 3)}, v{vaddr} offset:{off}
    v_min3_u32 v{vt}, v{vt}, v{vt+1}, v{vt+2}
    v_readfirstlane_b32 s{st}, v{vt}
    s_cmp_ge_u32 s{st}, {need}
    s_cbranch_scc1 {L}_ok
    s_sleep {SLEEP}
    s_branch {L}
    """)
    p.label(L + "_ok")
    p.vm = vm_saved
def poll1(vaddr, off, need, vt, st):
    uid[0] += 1
    L = f"LP{uid[0]}"
    vm_saved = p.vm
    p.vm = []
    p.label(L)
    p(f"""
    ds_read_b32 v{vt}, v{vaddr} offset:{off}
    v_readfirstlane_b32 s{st}, v{vt}
    s_cmp_ge_u32 s{st}, {need}
    s_cbranch_scc1 {L}_ok
    s_sleep {SLEEP}
    s_branch {L}
    """)
    p.label(L + "_ok")
    p.vm = vm_saved

kernel_head(KA)
p(f"""
s_cmp_ge_u32 s2, 256
s_cbranch_scc1 LA_end
s_load_dwordx16 s[16:31], s[0:1], 0
v_lshrrev_b32 v1, 6, v0
v_and_b32 v0, 63, v0
v_readfirstlane_b32 s3, v1
v_lshlrev_b32 v2, 2, v0
v_add_u32 v2, {CTL}, v2
v_mov_b32 v3, 0
ds_write_b32 v2, v3
s_and_b32 s4, s2, 7
s_lshr_b32 s5, s2, 3
s_and_b32 s6, s4, 1
s_lshl_b32 s6, s6, 3
s_and_b32 s7, s5, 7
s_add_u32 s6, s6, s7            ; b
s_lshr_b32 s7, s4, 1
s_lshl_b32 s7, s7, 2
s_lshr_b32 s8, s5, 3
s_add_u32 s7, s7, s8
s_add_u32 s12, s7, s6           ; b + pair
s_lshl_b32 s7, s7, 1            ; h0
s_and_b32 s8, s3, 3             ; i
s_lshr_b32 s9, s3, 2
s_mul_i32 s12, s12, {ROT}
s_mul_i32 s13, s12, 52
s_lshr_b32 s13, s13, 8
s_mul_i32 s13, s13, 5
s_sub_u32 s97, s12, s13         ; rot
""")
for j in range(1, 5):
    p(f"""
    s_add_u32 s{97+j}, s{96+j}, 1
    s_cmp_eq_u32 s{97+j}, 5
    s_cselect_b32 s{97+j}, 0, s{97+j}
    """)
CPF = int(OPT.get('cpf', 0))
if CPF:
    p("""
    s_getpc_b64 s[12:13]
    v_lshlrev_b32 v2, 4, v0
    v_lshl_add_u32 v2, v1, 12, v2
    """)
    for q in range(4):
        p.raw(f"    global_load_dwordx4 v[{240+4*q}:{243+4*q}], v2, s[12:13] offset:{q*1024}")
p("s_waitcnt lgkmcnt(0)")
srd(48, 30, WS_BYTES)
srd(84, 26, 16 * 96 * 640 * 2)
srd(88, 28, 256)
p("""
s_lshr_b32 s92, s4, 1
s_lshl_b32 s92, s92, 3
s_and_b32 s12, s5, 7
s_add_u32 s92, s92, s12         ; m48
s_and_b32 s93, s4, 1
s_lshl_b32 s93, s93, 2
s_lshr_b32 s12, s5, 3
s_add_u32 s93, s93, s12         ; nt80
""")
stamp_init()
stamp(3, 4)
DBGT = int(OPT.get('dbgt', 0))
if DBGT:
    p("""
    s_memtime s[64:65]
    s_memrealtime s[66:67]
    s_waitcnt lgkmcnt(0)
    """)
p("""
s_cmp_lt_u32 s8, 3
s_cbranch_scc1 LA_comp
v_lshrrev_b32 v1, 4, v0         ; rr
v_and_b32 v2, 15, v0
v_mov_b32 v30, 0
s_cmp_eq_u32 s9, 0
s_cbranch_scc1 LA_kv
""")
srd(44, 22, 640 * 4096 * 2)
p(f"""
s_lshl_b32 s14, s7, 8
v_lshlrev_b32 v3, 2, v1
v_xor_b32 v2, v2, v3
v_lshlrev_b32 v2, 4, v2
v_lshl_add_u32 v9, v1, 13, v2
v_add_u32 v10, 31744, v9
v_add_u32 v11, 63488, v9
v_add_u32 v12, 95232, v9
""")
def issueW(t):
    h, idx = t // 10, t % 10
    p.cur_tag = 'W%d' % t
    p(f"s_lshl_b32 s15, s{97 + idx // 2}, 20")
    p(f"s_add_u32 s15, s15, s14")
    for g in range(4):
        p(f"s_mov_b32 m0, {WSL[t] + g * 4096}")
        p(f"s_add_u32 s13, s15, {h * 256 + (64 * (idx % 2) + 16 * g) * 8192}")
        for q in range(4):
            p(f"buffer_load_dwordx4 v{9+q}, s[44:47], s13 offen offset:{q*1024} lds")
    p.cur_tag = None
def publish(flag, val):
    p(f"v_mov_b32 v31, {val}")
    p(f"ds_write_b32 v29, v31 offset:{flag - CTL}")
p(f"s_setprio {int(OPT.get('l1prio', 3))}")
sst()
issueW(0)
p(f"v_mov_b32 v29, {CTL}")
p("s_barrier")
pub = [0]
def land_upto(l):
    while pub[0] <= l:
        p.wait_tag(['W%d' % pub[0]]); publish(F_W, pub[0] + 1); sst(); pub[0] += 1
for t in range(1, 20):
    if t == 10:
        land_upto(9)
        if USTART: poll1(29, F_KV - CTL, USTART, 4, 12)
    m = WPRED[t]
    if m is not None:
        land_upto(min(m + 2, t - 1) if t < 10 else m)
        poll3(29, (F_AW if m < 10 else F_BW) - CTL, m + 1, 4, 12)
    issueW(t)
    if t == KVSTART: publish(F_GO, 1)
    land_upto(t - (WD if t < 10 else 2))
land_upto(19)
p("v_mov_b32 v16, v0")
srd(40, 24, 4096 * 640 * 2)
p(f"""
v_lshlrev_b32 v68, 4, v16
v_mul_u32_u24 v112, 26, v16
v_lshrrev_b32 v112, 8, v112     ; lane/10
v_mul_u32_u24 v112, {1280 - 160}, v112
v_add_u32 v69, v68, v112
v_lshrrev_b32 v113, 4, v16      ; kg
v_and_b32 v112, 1, v113
v_lshlrev_b32 v112, 4, v112
v_lshrrev_b32 v114, 1, v113
v_lshl_add_u32 v112, v114, 2, v112
v_bfe_u32 v114, v16, 2, 2
v_add_u32 v112, v112, v114
v_mul_u32_u24 v112, 160, v112
v_add_u32 v112, {WOST}, v112
v_and_b32 v114, 3, v16
v_lshl_add_u32 v70, v114, 4, v112
v_lshl_add_u32 v71, v114, 3, v112
s_mul_i32 s59, s92, {128 * 1280}
s_mul_i32 s13, s93, 160
s_add_u32 s59, s59, s13         ; src
s_lshl_b32 s12, s93, 7
s_lshl_b32 s13, s92, 2
s_add_u32 s12, s12, s13
s_mul_i32 s5, s12, 5120
s_add_u32 s5, s5, {WFR}         ; dst
""")
def wo_st(r):
    for f in range(10):
        p(f"s_add_u32 s13, s5, {(10 * r + f) * 1024}")
        p(f"buffer_store_dwordx4 {v(72 + 4 * f, 4)}, v68, s[48:51], s13 offen {SPOL}")
for r in range(2):
    p.cur_tag = 'wo'
    p("s_mov_b32 exec_hi, 0xfffffff")
    for i in range(11):
        if i == 10: p("s_mov_b32 exec_hi, 0xff")
        p(f"s_mov_b32 m0, {WOST + 960 * i}")
        p(f"s_add_u32 s13, s59, {(64 * r + 6 * i) * 1280}")
        p(f"buffer_load_dwordx4 v69, s[40:43], s13 offen lds")
    p("s_mov_b64 exec, -1")
    p.cur_tag = None
    if r == 1: wo_st(0)
    p.wait_tag(['wo'])
    for f in range(10):
        tl, j = f // 5, f % 5
        o = 32 * 160 * tl + (64 * (j // 2) + 8 * (j % 2) if j < 4 else 128)
        a_ = 70 if j < 4 else 71
        p(f"ds_read_b64_tr_b16 {v(72 + 4 * f, 2)}, v{a_} offset:{o}")
        p(f"ds_read_b64_tr_b16 {v(74 + 4 * f, 2)}, v{a_} offset:{o + 8 * 160}")
    p("s_waitcnt lgkmcnt(0)")
wo_st(1)
poll1(29, F_OK - CTL, 1, 112, 12)
p(f"""
s_lshl_b32 s12, s93, 8
s_lshl_b32 s13, s92, 2
s_add_u32 s12, s12, s13
s_add_u32 s12, s12, {FLG + 4096}
s_waitcnt vmcnt(0)
s_mov_b64 exec, 1
buffer_store_dword v112, off, s[48:51], s12 sc1
s_mov_b64 exec, -1
""")
sst_flush()
p("s_branch LA_gemm")

p.label("LA_kv")
srd(36, 18, 67108864)
srd(40, 20, 67108864)
p(f"""
s_lshl_b32 s11, s6, 5
s_add_u32 s11, s11, s7
s_lshl_b32 s11, s11, 17
v_xor_b32 v3, v2, v1
v_lshlrev_b32 v3, 4, v3
v_lshl_add_u32 v4, v1, 8, v3
v_xor_b32 v5, 64, v4
v_xor_b32 v6, 0x80, v4
v_xor_b32 v7, 0xc0, v4
v_lshlrev_b32 v3, 2, v1
v_xor_b32 v2, v2, v3
v_lshlrev_b32 v2, 4, v2
v_lshl_add_u32 v8, v1, 8, v2
v_mov_b32 v29, {CTL}
s_barrier
s_cmp_eq_u32 s2, 0
s_cbranch_scc0 LA_nononce
s_memrealtime s[12:13]
s_waitcnt lgkmcnt(0)
s_or_b32 s12, s12, 1
v_mov_b32 v12, s12
s_mov_b64 exec, 1
buffer_store_dword v12, off, s[88:91], 0 sc1
s_mov_b64 exec, -1
""")
p.label("LA_nononce")
p("""
""")
def issueT(n):
    kind = 'K' if n % 8 < 4 else 'V'; h = n // 16; idx = 4 * ((n // 8) % 2) + n % 4
    p.cur_tag = 'T%d' % n
    for g in range(4):
        p(f"s_mov_b32 m0, {RS[(n + RO) % NR] + g * 4096}")
        p(f"s_add_u32 s13, s11, {h * 131072 + idx * 16384 + g * 4096}")
        for q in range(4):
            vr, sd, pol = (4 + q, 36, KPOL) if kind == 'K' else (8, 40, VPOL)
            p(f"buffer_load_dwordx4 v{vr}, s[{sd}:{sd+3}], s13 offen offset:{q*1024} {pol} lds")
    p.cur_tag = None
if KVSTART: poll1(29, F_GO - CTL, 1, 12, 12)
def tagwait():
    p("s_mov_b32 s53, 0")
    p.label("LA_tagwait")
    p(f"""
    buffer_load_dword v12, off, s[88:91], 0 sc1
    s_add_u32 s53, s53, 1
    v_readfirstlane_b32 s12, v12
    s_cmp_ge_u32 s53, {SPINCAP}
    s_cbranch_scc1 LA_taggo
    s_cmp_lg_u32 s12, 0
    s_cbranch_scc1 LA_taggo
    s_sleep {GSLEEP}
    s_branch LA_tagwait
    """)
    p.label("LA_taggo")
    p(f"ds_write_b32 v29, v12 offset:{F_OK - CTL}")
for n in range(32 + KVD - 1):
    if n < 32:
        if n < 2:
            poll3(29, F_AW - CTL, 5 + n, 12, 12)
        if n == 5:
            poll3(29, F_AW - CTL, 10, 12, 12)
        if n == 2:
            tagwait()
            poll3(29, F_AX - CTL, 5, 12, 12); poll3(29, F_BX - CTL, 5, 12, 12)
        if n >= NR:
            m = n - NR
            poll3(29, (F_AKV if m < 16 else F_BKV) - CTL, m + 1, 12, 12)
        issueT(n)
    l = n - (KVD - 1)
    if l >= 0:
        p.wait_tag(['T%d' % l]); publish(F_KV, l + 1)
        if l % 2: sst()
sst_flush()
p("s_branch LA_gemm")

S0, O0, Q0, F0 = 128, 64, 32, 16
VKB, VVB, VCT, VXB, VM, VL, T0, T1 = 8, 9, 10, 11, 12, 13, 14, 15
SEEN, NEED = 54, 55
p.label("LA_comp")
p(f"""
v_mov_b32 v16, v0               ; lane
v_and_b32 v17, 31, v16          ; q / key
v_lshrrev_b32 v18, 5, v16       ; hi
v_and_b32 v19, 15, v16          ; t' = 4r+c
v_bfe_u32 v20, v16, 4, 1        ; dhalf
v_lshrrev_b32 v21, 2, v19       ; r
v_and_b32 v22, 3, v19           ; c
v_xor_b32 v23, v18, v19
v_lshlrev_b32 v23, 4, v23
v_lshl_add_u32 v{VKB}, v17, 8, v23
s_lshl_b32 s4, s8, 13
s_add_u32 s12, s4, {XA[0]}
v_add_u32 v{VXB}, s12, v{VKB}
v_lshl_add_u32 v23, v18, 2, v21
v_lshlrev_b32 v23, 8, v23
v_lshl_add_u32 v23, v21, 6, v23
v_lshl_add_u32 v24, v20, 5, v23
v_lshl_add_u32 v{VVB}, v22, 3, v24
v_lshl_add_u32 v23, v18, 3, v21
v_lshlrev_b32 v23, 8, v23
v_lshl_add_u32 v23, v21, 6, v23
v_lshl_add_u32 v23, v20, 5, v23
v_and_b32 v24, 1, v22
v_lshl_add_u32 v23, v24, 4, v23
v_lshrrev_b32 v24, 1, v22
v_lshl_add_u32 v23, v24, 3, v23
v_add_u32 v0, {GS[0]}, v23
v_xor_b32 v1, 64, v0
v_xor_b32 v2, 0x80, v0
v_xor_b32 v3, 0xc0, v0
s_mov_b32 s15, {f32(SC)}
s_mul_i32 s14, s6, {2 * 393216}
s_add_u32 s12, s7, s9
s_mul_i32 s12, s12, 12288
s_add_u32 s14, s14, s12         ; O soffset
s_mul_i32 s10, s9, {((16 + RO) % NR - RO) * K16}
s_add_u32 s10, s10, {RO * K16}
v_mov_b32 v{VM}, {f32(-1e30)}
v_mov_b32 v{VL}, 0
v_mov_b32 v{VCT}, {CTL}
s_lshl_b32 s12, s8, 2
s_lshl_b32 s13, s9, 4
s_add_u32 s13, s13, s12
v_add_u32 v4, s12, v{VCT}       ; CTL + 4i
v_add_u32 v5, s13, v{VCT}
""")
rstamp(T0, 62)
stamp(T0)

def check(flag_off, vaddr, need, vt):
    uid[0] += 1
    L = f"LC{uid[0]}"
    p(f"v_readfirstlane_b32 s{SEEN}, v{vt}")
    p(f"s_cmp_ge_u32 s{SEEN}, {need}")
    p._put(f"s_cbranch_scc0 {L}")
    p.raw(f"{L}_ret:")
    cold.append(f"""{L}:
    s_sleep {SLEEP}
    ds_read_b32 v{vt}, v{vaddr} offset:{flag_off}
    s_waitcnt lgkmcnt(0)
    v_readfirstlane_b32 s{SEEN}, v{vt}
    s_nop 3
    s_cmp_ge_u32 s{SEEN}, {need}
    s_cbranch_scc0 {L}
    s_branch {L}_ret""")

def xreg(ks):
    return Q0 + 4 * ks if ks < 8 else S0 + 4 * (ks - 8)
def xreads(j):
    for ss in range(8):
        tr = (T0, T1)[ss % 2]
        p(f"v_xor_b32 v{tr}, {ss << 5}, v{VXB}")
        p(f"ds_read_b128 {v(xreg(8 * j + ss), 4)}, v{tr} offset:{XA[j % 2] - XA[0]}")

CK = 6
def stream(items, flag, D=4):
    N = len(items)
    nxt = 0; cur_tile = None
    def early(k):
        p(f"ds_read_b32 v{items[k]['ck']}, v{VCT} offset:{flag - CTL}")
    def issue_reads(upto):
        nonlocal nxt, cur_tile
        while nxt < min(upto, N):
            it = items[nxt]
            if it['tile'] != cur_tile:
                it['enter']()
                cur_tile = it['tile']
            A = F0 + 4 * (nxt % D)
            for t in it['rd'](A): p(t)
            if nxt + 5 < N and items[nxt + 5]['tile'] != items[nxt + 4]['tile']: early(nxt + 5)
            nxt += 1
            if nxt == N or items[nxt]['tile'] != cur_tile: it['leave']()
    early(0)
    issue_reads(D)
    for n in range(N):
        it = items[n]
        p(it['mf'](F0 + 4 * (n % D)))
        issue_reads(n + D + 1)
        for t in it.get('fill', []):
            if callable(t): t()
            else: p(t)

def qproj(grp):
    items = []
    for t in range(10):
        g = 10 * grp + t
        lowr = WSL[g] < GS[0]
        so = WSL[g] - (0 if lowr else GS[0])
        prev_low = (g % 10 > 0) and WSL[g - 1] < GS[0]
        def enter(t=t, g=g, lowr=lowr, prev_low=prev_low):
            if lowr != prev_low:
                for x in range(4):
                    p(f"v_subrev_u32 v{x}, {GS[0]}, v{x}" if lowr else f"v_add_u32 v{x}, {GS[0]}, v{x}")
            if STAMP == 5: sst()
            check(F_W - CTL, VCT, g + 1, CK)
            if STAMP == 5: sst()
            if grp == 0 and t == 0:
                p(f"ds_read_b32 v{CK}, v4 offset:{F_XL - CTL}")
                check(F_XL - CTL, 4, 1, CK)
                xreads(0)
                p(f"v_mov_b32 v7, 1")
                p(f"ds_write_b32 v4, v7 offset:{F_AX - CTL}")
        def leave(g=g):
            p(f"v_mov_b32 v7, {g + 1}")
            p(f"ds_write_b32 v5, v7 offset:{F_AW - CTL}")
        for k4 in range(4):
            ks = 4 * t + k4
            for Tt in range(4):
                c = '0' if ks == 0 else v(O0 + 16 * Tt, 16)
                idx = 4 * k4 + Tt
                fill = []
                js = [j for j in range(1, 5) if XB[j] == t] if grp == 0 else []
                assert len(js) <= 1
                if js:
                    j = js[0]
                    if idx == 0: fill = [f"ds_read_b32 v{T1}, v4 offset:{F_XL - CTL}"]
                    if idx == 3: fill = [lambda j=j: check(F_XL - CTL, 4, j + 1, T1)]
                    if 3 <= idx < 11:
                        ss = idx - 3
                        fill += [f"v_xor_b32 v{T0}, {ss << 5}, v{VXB}",
                                 f"ds_read_b128 {v(xreg(8 * j + ss), 4)}, v{T0} offset:{XA[j % 2] - XA[0]}"]
                    if idx == 10: fill += [f"v_mov_b32 v{T1}, {j + 1}", f"ds_write_b32 v4, v{T1} offset:{F_AX - CTL}"]
                items.append(dict(
                    tile=t, enter=enter, leave=leave, ck=CK, fill=fill,
                    mf=lambda A, Tt=Tt, ks=ks, c=c: f"v_mfma_f32_32x32x16_bf16 {v(O0 + 16*Tt, 16)}, {v(A, 4)}, {v(xreg(ks), 4)}, {c}",
                    rd=lambda A, Tt=Tt, k4=k4, so=so: [
                        f"ds_read_b64_tr_b16 {v(A, 2)}, v{Tt} offset:{so + 4096 * k4}",
                        f"ds_read_b64_tr_b16 {v(A + 2, 2)}, v{Tt} offset:{so + 4096 * k4 + 1024}"]))
    stream(items, F_W)
    if STAMP == 5:
        n_ = nst[0]
        for i in range(n_):
            p(f"v_mov_b32 v7, s{64 + i}")
            p(f"buffer_store_dword v7, off, s[60:63], s58 offset:{128 + 4 * i}")
        nst[0] = 0
    for Tt in range(4):
        for j in range(8):
            p(f"v_cvt_pk_bf16_f32 v{Q0 + 8*Tt + j}, v{O0 + 16*Tt + 2*j}, v{O0 + 16*Tt + 2*j + 1}")

p("""
s_cmp_eq_u32 s9, 0
s_cbranch_scc0 LA_qb
""")
if PRIO: p(f"s_setprio {PRIO}")
p("s_barrier")
if CPF: p("s_waitcnt vmcnt(0)")
qproj(0)
p("s_branch LA_attn")
p.label("LA_qb")
XV = O0
srd(32, 16, 16 * 96 * 640 * 2)
p(f"""
v_lshrrev_b32 v{XV+4}, 4, v16
v_xor_b32 v{XV+5}, v19, v{XV+4}
v_lshlrev_b32 v{XV+5}, 4, v{XV+5}
v_mul_u32_u24 v{XV+4}, 1280, v{XV+4}
v_add_u32 v{XV}, v{XV+4}, v{XV+5}
v_xor_b32 v{XV+1}, 64, v{XV+5}
v_xor_b32 v{XV+2}, 0x80, v{XV+5}
v_xor_b32 v{XV+3}, 0xc0, v{XV+5}
v_add_u32 v{XV+1}, v{XV+4}, v{XV+1}
v_add_u32 v{XV+2}, v{XV+4}, v{XV+2}
v_add_u32 v{XV+3}, v{XV+4}, v{XV+3}
v_add_u32 v{XV+1}, 4096, v{XV+1}
v_add_u32 v{XV+2}, 8192, v{XV+2}
v_add_u32 v{XV+3}, 12288, v{XV+3}
s_mul_i32 s5, s6, 122880
s_mul_i32 s12, s8, 40960
s_add_u32 s5, s5, s12
""")
def xissue(j):
    p.cur_tag = 'X%d' % j
    for g in range(2):
        p(f"s_add_u32 s12, s4, {XA[j % 2] + g * 4096}")
        p("s_mov_b32 m0, s12")
        p(f"s_lshl_b32 s13, s{97 + j}, 8")
        p(f"s_add_u32 s13, s13, s5")
        p(f"s_add_u32 s13, s13, {16 * g * 1280}")
        for q in range(4):
            p(f"buffer_load_dwordx4 v{XV + q}, s[32:35], s13 offen offset:{q*1024} lds")
    p.cur_tag = None
xissue(0)
p("s_barrier")
def xland(j):
    p.wait_tag(['X%d' % j])
    p(f"v_mov_b32 v7, {j + 1}")
    p(f"ds_write_b32 v4, v7 offset:{F_XL - CTL}")
    if j == 0: xissue(1)
    xreads(j)
    p("s_waitcnt lgkmcnt(0)")
def xnext(j):
    poll1(4, F_AX - CTL, j - 1, CK, SEEN)
    xissue(j)
xland(0); xnext(2); xland(1); xnext(3); xland(2); xnext(4); xland(3); xland(4)
p(f"ds_write_b32 v4, v7 offset:{F_BX - CTL}")
qproj(1)
if PRIO: p(f"s_setprio {PRIO - 1}")
p.label("LA_attn")
p(f"""
s_mov_b32 s53, 0
s_lshl_b32 s{NEED}, s9, 4
v_mov_b32 v{VXB}, v5
""")
VDN = VXB
p.label("LA_unit")
stamp(T0)
def kv_enter(base, sh, na, ck):
    def f():
        p(f"s_add_u32 s{NEED}, s{NEED}, 1")
        p(f"v_add_u32 v0, s10, v{base}")
        for x in range(1, na): p(f"v_xor_b32 v{x}, {x << sh}, v0")
        p("s_add_u32 s10, s10, 16384")
        p(f"s_cmp_eq_u32 s10, {NR * K16}")
        p("s_cselect_b32 s10, 0, s10")
        check(F_KV - CTL, VCT, f"s{NEED}", ck)
    return f
def kv_leave(tmp):
    def f():
        p(f"v_mov_b32 v{tmp}, s{NEED}")
        p(f"ds_write_b32 v{VDN}, v{tmp} offset:{F_AKV - CTL}")
    return f
items = []
for n in range(8):
    j, a = n // 2, n % 2
    ckr = S0 + 16 * 7 + 15; tmpr = S0 + 16 * 7 + 14 if j < 3 else 0
    for ss in range(8):
        c = '0' if ss == 0 else v(S0 + 16 * n, 16)
        fill = []
        if n > 0 and ss >= 4:
            b = S0 + 16 * (n - 1) + 4 * (ss - 4)
            for e, tr in enumerate((T0, T1)):
                if n == 1 and ss == 4:
                    fill.append(f"v_max_f32 v{tr}, v{b + 2*e}, v{b + 2*e + 1}")
                else:
                    fill.append(f"v_max3_f32 v{tr}, v{tr}, v{b + 2*e}, v{b + 2*e + 1}")
        items.append(dict(
            tile=j, fill=fill, enter=kv_enter(VKB, 5, 8, ckr), leave=kv_leave(tmpr), ck=ckr,
            mf=lambda A, n=n, ss=ss, c=c: f"v_mfma_f32_32x32x16_bf16 {v(S0 + 16*n, 16)}, {v(A, 4)}, {v(Q0 + 4*ss, 4)}, {c}",
            rd=lambda A, a=a, ss=ss: [f"ds_read_b128 {v(A, 4)}, v{ss} offset:{8192 * a}"]))
stream(items, F_KV)
for q4 in range(4):
    b = S0 + 16 * 7 + 4 * q4
    for e, tr in enumerate((T0, T1)):
        p(f"v_max3_f32 v{tr}, v{tr}, v{b + 2*e}, v{b + 2*e + 1}")
MC, AL = 4, 5
stamp(6)
p(f"""
v_max_f32 v{T0}, v{T0}, v{T1}
v_mov_b32 v{T1}, v{T0}
v_permlane32_swap_b32 v{T0}, v{T1}
v_max3_f32 v{T0}, v{T0}, v{T1}, v{VM}
v_sub_f32 v{AL}, v{VM}, v{T0}
v_mul_f32 v{AL}, s15, v{AL}
v_exp_f32 v{AL}, v{AL}
v_mov_b32 v{VM}, v{T0}
v_mul_f32 v{MC}, s15, v{T0}
v_mul_f32 v{VL}, v{VL}, v{AL}
""")
def pops(f):
    r = S0 + 8 * f
    F = lambda i: f"v_fma_f32 v{r+i}, v{r+i}, s15, -v{MC}"
    E = lambda i: f"v_exp_f32 v{r+i}, v{r+i}"
    A = lambda i: f"v_add_f32 v{VL}, v{VL}, v{r+i}"
    C = lambda i: f"v_cvt_pk_bf16_f32 v{r+i}, v{r+2*i}, v{r+2*i+1}"
    return [F(0), F(1), E(0), E(1), F(2), F(3), E(2), E(3), A(0), A(1), C(0), F(4), F(5), E(4), E(5), A(2), A(3), C(1),
            F(6), F(7), E(6), E(7), A(4), A(5), C(2), A(6), A(7), C(3)]
for i in range(64):
    p(f"v_mul_f32 v{O0+i}, v{O0+i}, v{AL}")
for t in pops(0): p(t)
stamp(6)
items = []
for f in range(16):
    j, k4 = f // 4, f % 4
    nx = pops(f + 1) if f < 15 else []
    for Tt in range(4):
        items.append(dict(
            tile=j, fill=nx[7 * Tt:7 * Tt + 7], enter=kv_enter(VVB, 6, 4, 6), leave=kv_leave(7), ck=6,
            mf=lambda A, Tt=Tt, f=f: f"v_mfma_f32_32x32x16_bf16 {v(O0 + 16*Tt, 16)}, {v(A, 4)}, {v(S0 + 8*f, 4)}, {v(O0 + 16*Tt, 16)}",
            rd=lambda A, Tt=Tt, k4=k4: [
                f"ds_read_b64_tr_b16 {v(A, 2)}, v{Tt} offset:{4096 * k4}",
                f"ds_read_b64_tr_b16 {v(A + 2, 2)}, v{Tt} offset:{4096 * k4 + 2048}"]))
stream(items, F_KV)
p("""
s_add_u32 s53, s53, 1
s_cmp_lt_u32 s53, 2
s_cbranch_scc1 LA_unit
""")
stamp(T0)
p(f"""
v_mov_b32 v{T1}, v{VL}
v_permlane32_swap_b32 v{VL}, v{T1}
v_add_f32 v{VL}, v{VL}, v{T1}
v_rcp_f32 v{VL}, v{VL}
v_mbcnt_lo_u32_b32 v0, -1, 0
v_mbcnt_hi_u32_b32 v0, -1, v0
v_bfe_u32 v1, v0, 4, 1
s_lshl_b32 s12, s8, 1
v_add_u32 v1, s12, v1           ; m16l
v_cmp_lt_u32 vcc, 2, v1
v_mov_b32 v2, {393216 - 3072}
v_cndmask_b32 v2, 0, v2, vcc
v_lshl_add_u32 v2, v1, 10, v2
v_lshrrev_b32 v3, 5, v0
v_lshl_add_u32 v2, v3, 9, v2
v_and_b32 v3, 15, v0
v_lshl_add_u32 v2, v3, 4, v2
""")
for f in range(8):
    r = O0 + 8 * f
    for i in range(8): p(f"v_mul_f32 v{r+i}, v{r+i}, v{VL}")
    for i in range(4): p(f"v_cvt_pk_bf16_f32 v{r+i}, v{r+2*i}, v{r+2*i+1}")
    if f % 2 == 0: p(f"s_add_u32 s12, s14, {(f // 2) * 3072}")
    p(f"buffer_store_dwordx4 {v(r, 4)}, v2, s[48:51], s12 offen offset:{(f % 2) * 256} {SPOL}")
stamp(T0)
p(f"""
s_lshl_b32 s12, s9, 4
v_add_u32 v4, s12, v{VCT}
v_mov_b32 v1, 1
s_waitcnt vmcnt(0)
s_mov_b64 exec, 1
ds_add_rtn_u32 v0, v4, v1 offset:28
v_readfirstlane_b32 s12, v0
s_mov_b32 s53, 0
s_cmp_eq_u32 s12, 2
s_waitcnt lgkmcnt(0)
s_cbranch_scc0 LA_pubdone
""")
poll1(VCT, F_OK - CTL, 1, 3, 12)
p(f"""
s_lshl_b32 s12, s6, 8
s_add_u32 s13, s7, s9
s_lshl_b32 s13, s13, 2
s_add_u32 s12, s12, s13
s_add_u32 s12, s12, {FLG}
buffer_store_dword v3, off, s[48:51], s12 sc1
""")
p.label("LA_pubdone")
p("s_mov_b64 exec, -1")
p.label("LA_gemm")
ACC, LB = 0, 72
X0, LO, LO2, FL, SN, CT, TA, TB = 60, 61, 62, 63, 64, 65, 66, 67
p(f"""
s_setprio 0
v_mbcnt_lo_u32_b32 v{X0}, -1, 0
v_mbcnt_hi_u32_b32 v{X0}, -1, v{X0}
v_lshlrev_b32 v{LO}, 4, v{X0}
v_add_u32 v{LO2}, 4096, v{LO}
v_and_b32 v{FL}, 31, v{X0}
v_lshlrev_b32 v{FL}, 2, v{FL}
v_mov_b32 v{CT}, {CTL}
ds_read_b32 v{SN}, v{CT} offset:{F_OK - CTL}
s_lshr_b32 s12, s92, 1
s_lshl_b32 s12, s12, 8
s_lshl_b32 s13, s93, 8
s_add_u32 s13, s13, 4096
v_mov_b32 v{TA}, s12
v_mov_b32 v{TB}, s13
v_cmp_gt_u32 vcc, 32, v{X0}
v_cndmask_b32 v{TA}, v{TB}, v{TA}, vcc
v_add_u32 v{FL}, v{FL}, v{TA}
s_mov_b32 s32, {FLG}
s_mul_i32 s33, s92, 393216      ; O base
s_mul_i32 s34, s93, {128 * 5120}
s_add_u32 s34, s34, {WFR}
s_lshr_b32 s35, s2, 3
s_lshl_b32 s12, s3, 2
s_add_u32 s35, s35, s12
s_and_b32 s35, s35, 31
s_mov_b32 s53, 0
""")
for i in range(60): p(f"v_mov_b32 v{ACC + i}, 0")
stamp(TB, 4)
mask = sum(1 << int(x) for x in NBG.split(',') if x != '')
SLEEP = 4
p(f"""
s_lshr_b32 s12, {mask}, s3
s_and_b32 s12, s12, 1
s_cmp_eq_u32 s12, 1
s_waitcnt lgkmcnt(0)
s_cbranch_scc1 LA_gloop
""")
poll1(CT, F_KV - CTL, 32, TA, 12)
p("s_branch LA_gloop")
p.label("LA_gstarve")
p(f"""
v_mov_b32 v{TA}, 1
s_mov_b64 exec, 1
ds_or_rtn_b32 v{TB}, v{CT}, v{TA} offset:{F_WOK - CTL}
s_mov_b64 exec, -1
v_readfirstlane_b32 s12, v{TB}
s_cmp_eq_u32 s12, 0
s_cbranch_scc1 LA_gpoll
s_sleep 2
s_branch LA_gloop
""")
p.label("LA_gpoll")
p(f"""
buffer_load_dword v{TA}, v{FL}, s[48:51], s32 offen sc1
s_add_u32 s53, s53, 1
v_cmp_eq_u32 vcc, v{TA}, v{SN}
s_and_b32 s12, vcc_lo, vcc_hi
s_cmp_ge_u32 s53, {SPINCAP}
s_cselect_b32 s12, -1, s12
v_mov_b32 v{TA}, s12
v_mov_b32 v{TB}, 0
ds_write_b32 v{CT}, v{TA} offset:{F_RDY - CTL}
s_andn2_b32 s12, s12, s36
s_cbranch_scc1 LA_gunlock
s_sleep {GSLEEP}
""")
p.label("LA_gunlock")
p(f"ds_write_b32 v{CT}, v{TB} offset:{F_WOK - CTL}")
p.label("LA_gloop")
p(f"""
ds_read_b32 v{TA}, v{CT} offset:{F_RDY - CTL}
ds_read_b32 v{TB}, v{CT} offset:12
v_readfirstlane_b32 s38, v{TA}
v_readfirstlane_b32 s36, v{TB}
s_cmp_eq_u32 s36, -1
s_cbranch_scc1 LA_gdone
s_andn2_b32 s38, s38, s36
s_cbranch_scc0 LA_gstarve
s_mov_b32 s39, s38
s_lshr_b64 s[38:39], s[38:39], s35
s_ff1_i32_b32 s37, s38
s_add_u32 s37, s37, s35
s_and_b32 s37, s37, 31          ; head
s_lshl_b32 s38, 1, s37
v_mov_b32 v{TA}, s38
s_mov_b64 exec, 1
ds_or_rtn_b32 v{TB}, v{CT}, v{TA} offset:12
s_mov_b64 exec, -1
v_readfirstlane_b32 s36, v{TB}
s_and_b32 s36, s36, s38
s_cbranch_scc1 LA_gloop
s_mul_i32 s40, s37, 12288
s_add_u32 s40, s40, s33
s_mul_i32 s41, s37, 20480
s_add_u32 s41, s41, s34
""")
stamp(TB, 4)
for t in range(4):
    b = LB + 32 * t
    p(f"s_add_u32 s12, s40, {t * 3072}")
    p(f"s_add_u32 s13, s41, {t * 5120}")
    for a_ in range(3):
        p(f"buffer_load_dwordx4 {v(b + 4 * a_, 4)}, v{LO}, s[48:51], s12 offen offset:{a_ * 1024} {LPOL}")
    for j in range(5):
        p(f"buffer_load_dwordx4 {v(b + 12 + 4 * j, 4)}, v{LO if j < 4 else LO2}, s[48:51], s13 offen offset:{(j % 4) * 1024} {LPOL}")
for t in range(4):
    b = LB + 32 * t
    for j in range(5):
        for a_ in range(3):
            acc = ACC + 4 * (5 * a_ + j)
            p(f"v_mfma_f32_16x16x32_bf16 {v(acc, 4)}, {v(b + 12 + 4 * j, 4)}, {v(b + 4 * a_, 4)}, {v(acc, 4)}")
stamp(TB, 4)
p("s_branch LA_gloop")
p.label("LA_gdone")
stamp(TA, 0)
p(f"""
s_barrier
s_mul_i32 s8, s3, 15360
v_add_u32 v64, s8, v{LO}
""")
for t in range(15):
    p(f"ds_write_b128 v64, {v(ACC + 4 * t, 4)} offset:{t * 1024}")
p(f"""
s_lshr_b32 s9, s3, 1            ; a
s_and_b32 s10, s3, 1            ; u
s_mul_i32 s11, s9, 5
s_lshl_b32 s12, s10, 1
s_add_u32 s11, s11, s12
s_add_u32 s12, s11, 1
s_cmp_eq_u32 s3, 6
s_cselect_b32 s11, 4, s11
s_cselect_b32 s12, 9, s12
s_cmp_eq_u32 s3, 7
s_cselect_b32 s11, 14, s11
s_cselect_b32 s12, 14, s12
s_lshl_b32 s11, s11, 10
s_lshl_b32 s12, s12, 10
v_add_u32 v65, s11, v{LO}
v_add_u32 v66, s12, v{LO}
v_add_u32 v67, {4 * 15360}, v65
v_add_u32 v68, {4 * 15360}, v66
s_waitcnt lgkmcnt(0)
s_barrier
""")
for src_ in range(8):
    for i in range(2):
        wa = (65 if src_ < 4 else 67) + i
        p(f"ds_read_b128 {v(72 + 8 * src_ + 4 * i, 4)}, v{wa} offset:{(src_ % 4) * 15360}")
p(f"""
s_mul_i32 s14, s92, {48 * 1280}
s_mul_i32 s15, s93, 160
s_add_u32 s14, s14, s15
v_and_b32 v1, 15, v{X0}
v_mul_u32_u24 v1, 1280, v1
v_lshrrev_b32 v2, 4, v{X0}
""")
for step in (1, 2, 4):
    for src_ in range(0, 8, 2 * step):
        for e in range(8):
            p(f"v_add_f32 v{72 + 8*src_ + e}, v{72 + 8*src_ + e}, v{72 + 8*(src_+step) + e}")
for i in range(4):
    p(f"v_cvt_pk_bf16_f32 v{72+i}, v{72+2*i}, v{72+2*i+1}")
rstamp(TA, 63)
if DBGT:
    p(f"""
    s_memtime s[68:69]
    s_memrealtime s[70:71]
    s_waitcnt lgkmcnt(0)
    s_sub_u32 s68, s68, s64
    s_sub_u32 s70, s70, s66
    v_mov_b32 v{TA}, s68
    v_mov_b32 v{TB}, s70
    s_and_b32 s12, s2, 0x7f
    s_or_b32 s12, s12, s3
    s_cmp_eq_u32 s12, 0
    s_cbranch_scc0 LA_nodbg
    s_lshr_b32 s12, s2, 4
    s_add_u32 s12, s12, 16
    buffer_store_dwordx2 v[{TA}:{TB}], off, s[88:91], s12
    """)
    p.label("LA_nodbg")
p(f"""
s_cmp_ge_u32 s3, 6
s_cbranch_scc1 LB_tail
s_mul_i32 s15, s9, {16 * 1280}
s_add_u32 s14, s14, s15
s_lshl_b32 s15, s10, 6
s_add_u32 s14, s14, s15
v_lshl_add_u32 v1, v2, 4, v1
buffer_store_dwordx4 v[72:75], v1, s[84:87], s14 offen
s_endpgm
""")
p.label("LB_tail")
p(f"""
s_mul_i32 s15, s10, {32 * 1280}
s_add_u32 s14, s14, s15
s_sub_u32 s15, 1, s10
s_mul_i32 s15, s15, {16 * 1280}
s_add_u32 s15, s15, s14
v_lshl_add_u32 v1, v2, 3, v1
buffer_store_dwordx2 v[72:73], v1, s[84:87], s14 offen offset:128
buffer_store_dwordx2 v[74:75], v1, s[84:87], s15 offen offset:128
""")
p.label("LA_end")
p("s_endpgm")
for c in cold: p.raw(c)
launch = "; @launch grid=(256,1,1) block=(512,1,1) lds=163840\n"
out = HDR + launch + '.amdgcn_target "amdgcn-amd-amdhsa--gfx950"\n.text\n' + p.text() + f""".section .rodata,"a"
.p2align 6
.amdhsa_kernel {KA}
  .amdhsa_next_free_vgpr 256
  .amdhsa_next_free_sgpr 102
  .amdhsa_accum_offset 256
  .amdhsa_group_segment_fixed_size 0
  .amdhsa_kernarg_size 64
  .amdhsa_user_sgpr_count 2
  .amdhsa_user_sgpr_kernarg_segment_ptr 1
  .amdhsa_system_sgpr_workgroup_id_x 1
.end_amdhsa_kernel
"""
open(sys.argv[1], 'w').write(out)
print("nops inserted:", p.nops_inserted, "lines:", len(p.out))
```
